```python
import torch

def _softmax(x, axis=-1):
    return torch.softmax(x, dim=axis)
def _gelu(x):
    return torch.nn.functional.gelu(x, approximate="tanh")
def _silu(x):
    return torch.nn.functional.silu(x)
def _sigmoid(x):
    return torch.sigmoid(x)
def _layernorm(x, axis=-1, eps=1e-5):
    m = x.mean(dim=axis, keepdim=True)
    v = x.var(dim=axis, keepdim=True, unbiased=False)
    return (x - m) / torch.sqrt(v + eps)
def _scatter_add(tgt, idx, src, axis=0):
    return tgt.clone().index_add_(axis, idx, src)
def _segment_sum(src, seg, n):
    out = torch.zeros((n,) + src.shape[1:], dtype=src.dtype)
    return out.index_add_(0, seg, src)
def _pad(x, pw):
    flat = tuple(v for pair in reversed(pw) for v in pair)
    return torch.nn.functional.pad(x, flat)

kernel_name = 'concat_heads__spectral_gfnet__grouped_kv_mqa__prompt'

def setup_inputs():

    _w = (lambda a: (lambda t: t.to(torch.bfloat16) if t.is_floating_point() else t)(torch.as_tensor(a)))
    def _A_setup():
        B, S, D = 1, 2048, 576
        Df = D // 2 + 1
        return {
            "x": _w((lambda *s: torch.randn(*s, dtype=torch.bfloat16) * 0.05)(B, S, D)),
            "w_r": _w((lambda *s: torch.randn(*s, dtype=torch.bfloat16) * 0.8)(S, Df) * 0.02),
            "w_i": _w((lambda *s: torch.randn(*s, dtype=torch.bfloat16) * 0.8)(S, Df) * 0.02),
        }
    _A_in = _A_setup()

    def _B_setup():
        B, S, D, H = 1, 2048, 576, 32
        Dh = D // H
        return {
            "x": _w((lambda *s: torch.randn(*s, dtype=torch.bfloat16) * 0.05)(B, S, D)),
            "wq": _w((lambda *s: torch.randn(*s, dtype=torch.bfloat16) * 0.8)(D, H * Dh)),
            "wk": _w((lambda *s: torch.randn(*s, dtype=torch.bfloat16) * 0.8)(D, Dh)),
            "wv": _w((lambda *s: torch.randn(*s, dtype=torch.bfloat16) * 0.05)(D, Dh)),
            "wo": _w((lambda *s: torch.randn(*s, dtype=torch.bfloat16) * 0.05)(H * Dh, D)),
        }
    _B_in = _B_setup()

    return {
        "A_x": _A_in["x"],
        "A_w_r": _A_in["w_r"],
        "A_w_i": _A_in["w_i"],
        "B_x": _B_in["x"],
        "B_wq": _B_in["wq"],
        "B_wk": _B_in["wk"],
        "B_wv": _B_in["wv"],
        "B_wo": _B_in["wo"],
    }

def reference(A_x, A_w_r, A_w_i, B_x, B_wq, B_wk, B_wv, B_wo):
    def _A_ref(x, w_r, w_i):
        B, S, D = x.shape
        X = (lambda x, axes=(-2,-1): torch.fft.rfft2(x.float(), dim=axes))(x, axes=(-2, -1))
        W = w_r + 1j * w_i
        X = X * W
        y = (lambda x, s, axes=(-2,-1): torch.fft.irfft2(x, s=s, dim=axes).to(torch.bfloat16))(X, (S, D), axes=(-2, -1))
        return y

    def _B_ref(x, wq, wk, wv, wo):
        B, S, D = x.shape
        H = 32
        Dh = D // H
        q = (lambda x, *d: x.permute(*d))((x @ wq).reshape(B, S, H, Dh), 0, 2, 1, 3)
        k = x @ wk
        v = x @ wv
        scores = torch.einsum("bhqd,bkd->bhqk", q, k) * (Dh ** -0.5)
        p = _softmax(scores, axis=-1)
        o = torch.einsum("bhqk,bkd->bhqd", p, v)
        return (lambda x, *d: x.permute(*d))(o, 0, 2, 1, 3).reshape(B, S, H * Dh) @ wo

    a = _A_ref(A_x, A_w_r, A_w_i)
    b = _B_ref(B_x, B_wq, B_wk, B_wv, B_wo)
    return torch.concatenate([a, b], axis=-1)
```

```python
class Asm:
    def __init__(self): self.l = []
    def __call__(self, s=''):
        for x in s.split('\n'):
            x = x.strip()
            if x: self.l.append(x if x.endswith(':') else '    ' + x)
    def text(self): return '\n'.join(self.l) + '\n'
def vr(a, n=1): return f'v{a}' if n == 1 else f'v[{a}:{a+n-1}]'
def sr(a, n=1): return f's{a}' if n == 1 else f's[{a}:{a+n-1}]'
def kd(name, vgpr, sgpr=102, accum=None):
    if accum is None: accum = min(256, (vgpr + 3)//4*4)
    return f""".section .rodata,"a"
.p2align 6
.amdhsa_kernel {name}
  .amdhsa_next_free_vgpr {vgpr}
  .amdhsa_next_free_sgpr {sgpr}
  .amdhsa_accum_offset {accum}
  .amdhsa_group_segment_fixed_size 0
  .amdhsa_kernarg_size 88
  .amdhsa_user_sgpr_count 2
  .amdhsa_user_sgpr_kernarg_segment_ptr 1
  .amdhsa_system_sgpr_workgroup_id_x 1
.end_amdhsa_kernel
.text
"""
def head(name):
    return f""".globl {name}
.p2align 8
.type {name},@function
{name}:
"""
```

```python
import math, struct
from asmlib import *
S_, D_, H_, DH = 2048, 576, 32, 18
WS_Q   = 0
WS_KV  = 0x0240000
WS_KMX = 0x0270000
WS_XC  = 0x0280000
WS_WT  = 0x04C0000
WS_ZC  = 0x0980000
WS_O   = 0x0BC0000
NB_ACT = S_*D_*2
KVT = 2560
QSCALE = math.log2(math.e) / math.sqrt(18.0)
def f32bits(x): return struct.unpack('<I', struct.pack('<f', x))[0]
def bf16(x):
    u = f32bits(x)
    return ((u + 0x7fff + ((u >> 16) & 1)) >> 16) & 0xffff
def srd(a, s, base, nbytes, off=0):
    if off:
        a(f's_add_u32 s{s}, s{base}, {off}\ns_addc_u32 s{s+1}, s{base+1}, 0')
    else:
        a(f's_mov_b32 s{s}, s{base}\ns_mov_b32 s{s+1}, s{base+1}')
    a(f's_mov_b32 s{s+2}, {nbytes}\ns_mov_b32 s{s+3}, 0x00020000')
def pc_addr(a, s, label, uniq):
    a(f's_getpc_b64 s[{s}:{s+1}]\n{uniq}:\ns_add_u32 s{s}, s{s}, {label}-{uniq}\ns_addc_u32 s{s+1}, s{s+1}, 0')
def ttab_text():
    s = ['.altmacro']
    for i in range(576): s.append(f'.set tc{i},{bf16(math.cos(2*math.pi*i/576))}')
    s.append('''.macro tab_e i
.short tc\\i
.endm
.macro tab_row p, o
.set tn,0
.rept 576
tab_e %((tn*p+o)%576)
.set tn,tn+1
.endr
.endm
.p2align 8
.type TTAB,@object
TTAB:
tab_row 0, 0
tab_row 288, 0
.set tp,1
.rept 287
tab_row %tp, 0
tab_row %tp, 144
.set tp,tp+1
.endr
.noaltmacro''')
    return '\n'.join(s) + '\n'
def data_text(label, arr16B):
    assert len(arr16B) % 8 == 0
    q = struct.unpack('<%dQ' % (len(arr16B)//8), arr16B)
    out = ['.p2align 8', f'.type {label},@object', f'{label}:']
    for i in range(0, len(q), 16):
        out.append('.quad ' + ','.join(hex(x) for x in q[i:i+16]))
    return '\n'.join(out) + '\n'
import os
STAMP = os.environ.get('STAMP')
WS_ST = 0x1800000
_stn = [0]
def stamp(a, idx, sbase=90):
    if not STAMP: return
    a(f's_memrealtime s[{sbase}:{sbase+1}]\ns_waitcnt lgkmcnt(0)\ns_mov_b32 s{sbase+2+idx}, s{sbase}')
def stamp_flush(a, n, sbase=90, vt=120):
    if not STAMP: return
    _stn[0] += 1
    a(f's_load_dwordx2 s[{sbase}:{sbase+1}], s[0:1], 80\ns_waitcnt lgkmcnt(0)\ns_add_u32 s{sbase}, s{sbase}, {WS_ST}\ns_addc_u32 s{sbase+1}, s{sbase+1}, 0')
    a(f'v_lshrrev_b32 v{vt}, 6, v{vt+3}\nv_lshlrev_b32 v{vt}, 6, v{vt}\ns_lshl_b32 s{sbase+2+n}, s2, 10\nv_add_u32 v{vt}, s{sbase+2+n}, v{vt}')
    for i in range(n):
        a(f'v_mov_b32 v{vt+1}, s{sbase+2+i}\nglobal_store_dword v{vt}, v{vt+1}, s[{sbase}:{sbase+1}] offset:{4*i}')
    a('s_waitcnt vmcnt(0)')
```

```python
from common import *
BUF = 28672
NBUF = 5
WOFF = 16384
vS   = 2
vW   = 6
vRS  = 12
vRW  = 16
vTS  = 20
vTW  = 24
vF   = 32
vA   = 64
vT   = 112
NV   = 128
sS, sW, sO = 8, 12, 16
sC, sBuf, sFill, sKS, sKW = 20, 21, 22, 23, 24
sSn, sWn = 25, 26
sT0, sT1, sT2 = 27, 28, 29
sWv = 30
sRow0, sCol0 = 31, 32

def lane_ids(a):
    if STAMP: a('v_mov_b32 v123, v0')
    stamp(a, 0)
    a(f'v_lshrrev_b32 v1, 6, v0\ns_nop 0\nv_readfirstlane_b32 s{sWv}, v1\nv_and_b32 v0, 63, v0')

def setup_R(a, which, stride, row0_s, ntile_mode):
    t = vT
    a(f'v_lshrrev_b32 v{t}, 3, v0\nv_and_b32 v{t+1}, 7, v0')
    if which == 'S':
        for q in range(4):
            a(f'v_add_u32 v{t+2}, {8*q}, v{t}\nv_lshrrev_b32 v{t+3}, 1, v{t+2}\nv_and_b32 v{t+3}, 7, v{t+3}\nv_xor_b32 v{t+3}, v{t+3}, v{t+1}')
            a(f's_lshl_b32 s{sT0}, s{sWv}, 5\ns_add_u32 s{sT0}, s{sT0}, s{row0_s}')
            a(f'v_add_u32 v{t+2}, s{sT0}, v{t+2}\ns_movk_i32 s{sT1}, {stride}\nv_mul_lo_u32 v{t+2}, v{t+2}, s{sT1}')
            a(f'v_lshl_add_u32 v{vS+q}, v{t+3}, 4, v{t+2}')
    else:
        a(f's_lshl_b32 s{sT0}, s{sWv}, 3\nv_add_u32 v{t+2}, s{sT0}, v{t}')
        a(f'v_lshrrev_b32 v{t+3}, 1, v{t+2}\nv_and_b32 v{t+3}, 7, v{t+3}\nv_xor_b32 v{t+3}, v{t+3}, v{t+1}')
        a(f'v_add_u32 v{t+2}, s{row0_s}, v{t+2}\ns_movk_i32 s{sT1}, {stride}\nv_mul_lo_u32 v{t+2}, v{t+2}, s{sT1}')
        a(f'v_lshl_add_u32 v{vW}, v{t+3}, 4, v{t+2}')
        for tt in (1, 2): a(f'v_add_u32 v{vW+tt}, {32*stride*tt}, v{vW}')
    dst = vRS if which == 'S' else vRW
    a(f'v_and_b32 v{t}, 31, v0\nv_lshrrev_b32 v{t+1}, 5, v0')
    a(f'v_lshrrev_b32 v{t+2}, 1, v{t}\nv_and_b32 v{t+2}, 7, v{t+2}\nv_xor_b32 v{t+2}, v{t+2}, v{t+1}')
    a(f'v_lshlrev_b32 v{t+3}, 7, v{t}')
    if which == 'S':
        a(f's_lshl_b32 s{sT0}, s{sWv}, 12\nv_add_u32 v{t+3}, s{sT0}, v{t+3}')
    else:
        a(f'v_add_u32 v{t+3}, {WOFF}, v{t+3}')
    for j in range(4):
        a(f'v_xor_b32 v{t+4}, {2*j}, v{t+2}\nv_lshl_add_u32 v{dst+j}, v{t+4}, 4, v{t+3}')

def setup_T(a, which, stride, col0_s):
    t = vT
    a(f'v_lshrrev_b32 v{t}, 2, v0\nv_and_b32 v{t+1}, 3, v0\nv_lshlrev_b32 v{t+1}, 4, v{t+1}')
    a(f's_mov_b32 s{sT1}, {stride}')
    if which == 'S':
        a(f's_lshl_b32 s{sT0}, s{sWv}, 5\ns_add_u32 s{sT0}, s{sT0}, s{col0_s}\ns_lshl_b32 s{sT0}, s{sT0}, 1')
        a(f'v_mul_lo_u32 v{t+2}, v{t}, s{sT1}\nv_add_u32 v{t+2}, v{t+2}, v{t+1}\nv_add_u32 v{vS}, s{sT0}, v{t+2}')
        for j in (1, 2, 3): a(f'v_add_u32 v{vS+j}, {16*stride*j}, v{vS}')
    else:
        a(f's_lshl_b32 s{sT0}, s{sWv}, 4\nv_add_u32 v{t}, s{sT0}, v{t}\nv_mul_lo_u32 v{t+2}, v{t}, s{sT1}\nv_add_u32 v{t+2}, v{t+2}, v{t+1}')
        a(f's_lshl_b32 s{sT0}, s{col0_s}, 1\nv_add_u32 v{vW}, s{sT0}, v{t+2}')
        for tt in (1, 2): a(f'v_add_u32 v{vW+tt}, {64*tt}, v{vW}')
    dst = vRS if which == 'S' else vRW
    a(f'v_lshrrev_b32 v{t}, 5, v0\nv_lshlrev_b32 v{t}, 3, v{t}\nv_bfe_u32 v{t+1}, v0, 2, 2\nv_add_u32 v{t}, v{t}, v{t+1}\nv_lshlrev_b32 v{t}, 6, v{t}')
    a(f'v_bfe_u32 v{t+1}, v0, 4, 1\nv_lshl_add_u32 v{t}, v{t+1}, 5, v{t}\nv_and_b32 v{t+1}, 3, v0\nv_lshl_add_u32 v{t}, v{t+1}, 3, v{t}')
    if which == 'S':
        a(f's_lshl_b32 s{sT0}, s{sWv}, 12\nv_add_u32 v{dst}, s{sT0}, v{t}')
    else:
        a(f'v_add_u32 v{dst}, {WOFF}, v{t}')

def dma_chunk(a, kS, kW, kv=False):
    a(f's_lshl_b32 s{sT0}, s{sWv}, 12\ns_add_u32 s{sT0}, s{sT0}, s{sFill}')
    for q in range(4):
        a(f's_add_u32 m0, s{sT0}, {1024*q}\ns_nop 0\nbuffer_load_dwordx4 v{vS+q}, s[{sS}:{sS+3}], s{sKS} offen lds')
    if not kv:
        a(f's_lshl_b32 s{sT0}, s{sWv}, 10\ns_add_u32 s{sT0}, s{sT0}, s{sFill}')
        for tt in range(3):
            a(f's_add_u32 m0, s{sT0}, {WOFF + 4096*tt}\ns_nop 0\nbuffer_load_dwordx4 v{vW+tt}, s[{sW}:{sW+3}], s{sKW} offen lds')
    else:
        a(f's_mul_i32 s{sT0}, s{sWv}, 1280\ns_add_u32 s{sT0}, s{sT0}, s{sFill}')
        for i in range(5):
            a(f's_add_u32 m0, s{sT0}, {WOFF + 256*i}\ns_nop 0\nbuffer_load_dword v{vW+i}, s[{sW}:{sW+3}], s{sKW} offen lds')

def reads(a, kS, kW, j, st, kv=False):
    f = vF + 16*st
    n = 0
    if kS == 'R': a(f'ds_read_b128 v[{f}:{f+3}], v{vTS+j}'); n += 1
    else:
        for rd in range(2): a(f'ds_read_b64_tr_b16 v[{f+2*rd}:{f+2*rd+1}], v{vTS} offset:{1024*j+256*rd}'); n += 1
    if kv:
        for tt in range(2):
            for rd in range(2):
                a(f'ds_read_b64_tr_b16 v[{f+4+4*tt+2*rd}:{f+4+4*tt+2*rd+1}], v{vTW} offset:{40*(16*j+4*rd)+2560*tt}'); n += 1
    else:
        for tt in range(3):
            g = f + 4 + 4*tt
            if kW == 'R': a(f'ds_read_b128 v[{g}:{g+3}], v{vTW+j} offset:{4096*tt}'); n += 1
            else:
                for rd in range(2): a(f'ds_read_b64_tr_b16 v[{g+2*rd}:{g+2*rd+1}], v{vTW} offset:{4096*tt+1024*j+256*rd}'); n += 1
    return n

def set_addrs(a, kS, kW, sreg):
    for j in range(4 if kS == 'R' else 1): a(f'v_add_u32 v{vTS+j}, s{sreg}, v{vRS+j}')
    for j in range(4 if kW == 'R' else 1): a(f'v_add_u32 v{vTW+j}, s{sreg}, v{vRW+j}')

def mainloop(a, name, kS, kW, dKS, dKW, kv=False):
    nd = 9 if kv else 7
    a(f's_mov_b32 s{sSn}, s{sS+2}\ns_mov_b32 s{sWn}, s{sW+2}')
    a(f's_mov_b32 s{sFill}, 0\ns_mov_b32 s{sKS}, 0\ns_mov_b32 s{sKW}, 0\ns_mov_b32 s{sC}, 0')
    a(f'{name}_pro:')
    dma_chunk(a, kS, kW, kv)
    a(f's_add_u32 s{sFill}, s{sFill}, {BUF}\ns_add_u32 s{sKS}, s{sKS}, {dKS}\ns_add_u32 s{sKW}, s{sKW}, {dKW}')
    a(f's_add_u32 s{sC}, s{sC}, 1\ns_cmp_lt_u32 s{sC}, 4\ns_cbranch_scc1 {name}_pro')
    nt = 2 if kv else 3
    for i in range(16*nt): a(f'v_mov_b32 v{vA+i}, 0')
    a(f's_mov_b32 s{sBuf}, 0\ns_mov_b32 s{sC}, 0')
    set_addrs(a, kS, 'T' if kv else kW, sBuf)
    stamp(a, 1)
    a(f's_waitcnt vmcnt({3*nd})\ns_barrier')
    stamp(a, 2)
    nr = reads(a, kS, kW, 0, 0, kv)
    a(f'{name}_loop:')
    a(f's_waitcnt vmcnt({2*nd})\ns_barrier')
    a(f's_cmp_lt_u32 s{sC}, 5\ns_cselect_b32 s{sS+2}, s{sSn}, 0\ns_cselect_b32 s{sW+2}, s{sWn}, 0')
    dma_chunk(a, kS, kW, kv)
    a(f's_add_u32 s{sFill}, s{sFill}, {BUF}\ns_cmp_ge_u32 s{sFill}, {BUF*NBUF}\ns_cselect_b32 s{sFill}, 0, s{sFill}')
    a(f's_add_u32 s{sKS}, s{sKS}, {dKS}\ns_add_u32 s{sKW}, s{sKW}, {dKW}')
    for j in range(4):
        st = j & 1
        if j < 3:
            n = reads(a, kS, kW, j+1, 1-st, kv)
        else:
            a(f's_add_u32 s{sBuf}, s{sBuf}, {BUF}\ns_cmp_ge_u32 s{sBuf}, {BUF*NBUF}\ns_cselect_b32 s{sBuf}, 0, s{sBuf}')
            set_addrs(a, kS, 'T' if kv else kW, sBuf)
            n = reads(a, kS, kW, 0, 1-st, kv)
        a(f's_waitcnt lgkmcnt({n})')
        f = vF + 16*st
        if kv:
            a(f'v_mfma_f32_32x32x16_bf16 v[{vA}:{vA+15}], v[{f+4}:{f+7}], v[{f}:{f+3}], v[{vA}:{vA+15}]')
            a(f'v_mfma_f32_32x32x16_bf16 v[{vA+16}:{vA+31}], v[{f}:{f+3}], v[{f+8}:{f+11}], v[{vA+16}:{vA+31}]')
        else:
            for tt in range(3):
                g = f + 4 + 4*tt; d = vA + 16*tt
                a(f'v_mfma_f32_32x32x16_bf16 v[{d}:{d+15}], v[{g}:{g+3}], v[{f}:{f+3}], v[{d}:{d+15}]')
    a(f's_add_u32 s{sC}, s{sC}, 1\ns_cmp_lt_u32 s{sC}, 9\ns_cbranch_scc1 {name}_loop')
    a('s_waitcnt vmcnt(0) lgkmcnt(0)\ns_nop 7\ns_nop 7')
    stamp(a, 3)

def epi_rowmajor(a, col_byte0_s, scale=None, rowstride=1152):
    t = vT
    a(f'v_and_b32 v{t}, 31, v0\ns_lshl_b32 s{sT0}, s{sWv}, 5\ns_add_u32 s{sT0}, s{sT0}, s{sRow0}\nv_add_u32 v{t}, s{sT0}, v{t}')
    a(f's_movk_i32 s{sT1}, {rowstride}\nv_mul_lo_u32 v{t}, v{t}, s{sT1}\nv_lshrrev_b32 v{t+1}, 5, v0\nv_lshl_add_u32 v{t}, v{t+1}, 3, v{t}')
    if scale is not None: a(f's_mov_b32 s{sT2}, {f32bits(scale)}')
    for tt in range(3):
        for g in range(4):
            d = vA + 16*tt + 4*g; p = t + 2 + 2*((tt*4+g) & 3)
            if scale is not None:
                for r in range(4): a(f'v_mul_f32 v{d+r}, s{sT2}, v{d+r}')
            a(f'v_cvt_pk_bf16_f32 v{p}, v{d}, v{d+1}\nv_cvt_pk_bf16_f32 v{p+1}, v{d+2}, v{d+3}')
            a(f'buffer_store_dwordx2 v[{p}:{p+1}], v{t}, s[{sO}:{sO+3}], s{col_byte0_s} offen offset:{64*tt+16*g}')
```

```python
from gemm import *
import os
def k1(a):
    only = os.environ.get('K1ONLY')
    a('s_cmp_ge_u32 s2, 256\ns_cbranch_scc1 K1_end')
    a('s_load_dwordx4 s[36:39], s[0:1], 0\ns_load_dwordx4 s[40:43], s[0:1], 16\ns_load_dwordx4 s[44:47], s[0:1], 32\ns_load_dwordx2 s[48:49], s[0:1], 48\ns_load_dwordx2 s[50:51], s[0:1], 80')
    lane_ids(a)
    if only:
        lo, hi = {'q': (0,96), 'a': (96,192), 'kv': (192,208), 'wt': (208,256)}[only]
        a(f's_cmp_lt_u32 s2, {lo}\ns_cbranch_scc1 K1_end\ns_cmp_ge_u32 s2, {hi}\ns_cbranch_scc1 K1_end')
    a('s_cmp_ge_u32 s2, 208\ns_cbranch_scc1 K1_wt')
    a('s_cmp_ge_u32 s2, 192\ns_cbranch_scc1 K1_kv')
    a('s_cmp_ge_u32 s2, 96\ns_cbranch_scc1 K1_af')
    a(f's_mul_i32 s{sT0}, s2, 10923\ns_lshr_b32 s{sT0}, s{sT0}, 16\ns_lshl_b32 s{sRow0}, s{sT0}, 7\ns_mul_i32 s{sT0}, s{sT0}, 6\ns_sub_u32 s{sT0}, s2, s{sT0}\ns_mul_i32 s{sCol0}, s{sT0}, 96')
    a('s_waitcnt lgkmcnt(0)')
    srd(a, sS, 42, NB_ACT); srd(a, sW, 44, 576*576*2); srd(a, sO, 50, NB_ACT, WS_Q)
    setup_R(a, 'S', 1152, sRow0, None); setup_T(a, 'W', 1152, sCol0)
    mainloop(a, 'K1q', 'R', 'T', 128, 64*1152)
    a(f's_lshl_b32 s33, s{sCol0}, 1')
    epi_rowmajor(a, 33, scale=QSCALE)
    if STAMP: a('s_waitcnt vmcnt(0)')
    stamp(a, 4); stamp_flush(a, 5)
    a('s_endpgm')
    a('K1_af:')
    a(f's_sub_u32 s3, s2, 96\ns_mul_i32 s{sT0}, s3, 10923\ns_lshr_b32 s{sT0}, s{sT0}, 16\ns_lshl_b32 s{sRow0}, s{sT0}, 7\ns_mul_i32 s{sT0}, s{sT0}, 6\ns_sub_u32 s{sT0}, s3, s{sT0}\ns_mul_i32 s{sCol0}, s{sT0}, 96')
    pc_addr(a, 52, 'TTAB', 'K1_pc1')
    a('s_waitcnt lgkmcnt(0)')
    srd(a, sS, 36, NB_ACT); srd(a, sW, 52, 576*1152); srd(a, sO, 50, 288*8192, WS_XC)
    setup_R(a, 'S', 1152, sRow0, None); setup_R(a, 'W', 1152, sCol0, None)
    mainloop(a, 'K1a', 'R', 'R', 128, 128)
    t = vT
    a(f'v_and_b32 v{t}, 31, v0\ns_lshl_b32 s{sT0}, s{sWv}, 5\ns_add_u32 s{sT0}, s{sT0}, s{sRow0}\nv_add_u32 v{t}, s{sT0}, v{t}\nv_lshlrev_b32 v{t}, 2, v{t}')
    a(f'v_lshrrev_b32 v{t+1}, 5, v0\nv_lshl_add_u32 v{t}, v{t+1}, 14, v{t}')
    a(f's_lshl_b32 s33, s{sCol0}, 12')
    for tt in range(3):
        for g in range(4):
            d = vA + 16*tt + 4*g
            for u in range(2):
                p = t + 2 + ((tt*8+g*2+u) & 7)
                a(f'v_cvt_pk_bf16_f32 v{p}, v{d+2*u}, v{d+2*u+1}')
                a(f's_add_u32 s34, s33, {(16*tt+4*g+u)*8192}\nbuffer_store_dword v{p}, v{t}, s[{sO}:{sO+3}], s34 offen')
    a('s_endpgm')
    a('K1_kv:')
    a(f's_sub_u32 s3, s2, 192\ns_lshl_b32 s{sRow0}, s3, 7')
    a('s_waitcnt lgkmcnt(0)')
    srd(a, sS, 42, NB_ACT)
    a(f's_cmp_lt_u32 s{sWv}, 2\ns_cselect_b32 s52, s46, s48\ns_cselect_b32 s53, s47, s49')
    srd(a, sW, 52, 576*36); srd(a, sO, 50, 64*KVT + 0x40000, WS_KV)
    setup_R(a, 'S', 1152, sRow0, None)
    t = vT
    a(f's_and_b32 s{sT0}, s{sWv}, 1\ns_mul_i32 s{sT0}, s{sT0}, 320')
    a(f's_movk_i32 s{sT1}, 6554')
    for i in range(5):
        a(f'v_add_u32 v{t}, s{sT0}, v0\nv_add_u32 v{t}, {64*i}, v{t}\nv_mul_lo_u32 v{t+1}, v{t}, s{sT1}\nv_lshrrev_b32 v{t+1}, 16, v{t+1}')
        a(f'v_mul_u32_u24 v{t+2}, 10, v{t+1}\nv_sub_u32 v{t+2}, v{t}, v{t+2}\nv_min_u32 v{t+2}, 8, v{t+2}\nv_mul_u32_u24 v{t+1}, 36, v{t+1}\nv_lshl_add_u32 v{vW+i}, v{t+2}, 2, v{t+1}')
    a(f'v_lshrrev_b32 v{t}, 5, v0\nv_lshlrev_b32 v{t}, 3, v{t}\nv_bfe_u32 v{t+1}, v0, 2, 2\nv_add_u32 v{t}, v{t}, v{t+1}\nv_mul_u32_u24 v{t}, 40, v{t}')
    a(f'v_bfe_u32 v{t+1}, v0, 4, 1\nv_lshl_add_u32 v{t}, v{t+1}, 5, v{t}\nv_and_b32 v{t+1}, 3, v0\nv_lshl_add_u32 v{t}, v{t+1}, 3, v{t}\nv_add_u32 v{vRW}, {WOFF}, v{t}')
    mainloop(a, 'K1kv', 'R', 'T', 128, 64*36, kv=True)
    a(f's_lshl_b32 s33, s3, 2\ns_add_u32 s33, s33, s{sWv}\ns_mul_i32 s34, s33, {KVT}')
    K = vA; V = vA+16
    for i in range(4): a(f'v_cvt_pk_bf16_f32 v{t+i}, v{K+2*i}, v{K+2*i+1}')
    a(f'v_lshlrev_b32 v{t+8}, 4, v0\nbuffer_store_dwordx4 v[{t}:{t+3}], v{t+8}, s[{sO}:{sO+3}], s34 offen')
    a(f'v_cvt_pk_bf16_f32 v{t+4}, v{K+8}, v{K+9}\nv_mov_b32 v{t+5}, 0x3f80\nv_lshlrev_b32 v{t+9}, 3, v0')
    a(f'v_mul_f32 v{t+6}, v{K}, v{K}')
    for i in range(1, 8): a(f'v_fmac_f32 v{t+6}, v{K+i}, v{K+i}')
    a(f'v_mul_f32 v{t+7}, v{K+8}, v{K+8}\nv_fmac_f32 v{t+7}, v{K+9}, v{K+9}')
    a(f'v_cmp_gt_u32 vcc, 32, v0\ns_nop 1\nv_cndmask_b32 v{t+7}, 0, v{t+7}, vcc\nv_add_f32 v{t+6}, v{t+6}, v{t+7}')
    a(f's_and_saveexec_b64 s[54:55], vcc\nbuffer_store_dwordx2 v[{t+4}:{t+5}], v{t+9}, s[{sO}:{sO+3}], s34 offen offset:1024\ns_mov_b64 exec, s[54:55]')
    a(f'v_mov_b32 v{t+7}, v{t+6}\ns_nop 1\nv_permlane32_swap_b32 v{t+6}, v{t+7}\nv_add_f32 v{t+6}, v{t+6}, v{t+7}')
    for off in (0x041F, 0x081F, 0x101F, 0x201F, 0x401F):
        a(f'ds_swizzle_b32 v{t+7}, v{t+6} offset:{off}\ns_waitcnt lgkmcnt(0)\nv_max_f32 v{t+6}, v{t+6}, v{t+7}')
    a(f's_lshl_b32 s35, s33, 2\ns_add_u32 s35, s35, {WS_KMX-WS_KV}\nv_mov_b32 v{t+10}, 0\nv_cmp_eq_u32 vcc, 0, v0')
    a(f's_and_saveexec_b64 s[54:55], vcc\nbuffer_store_dword v{t+6}, v{t+10}, s[{sO}:{sO+3}], s35 offen\ns_mov_b64 exec, s[54:55]')
    a(f'v_and_b32 v{t+8}, 31, v0\nv_lshrrev_b32 v{t+9}, 5, v0\nv_mul_u32_u24 v{t+9}, 20, v{t+9}\nv_add_u32 v{t+9}, v{t+9}, v{t+8}\nv_lshlrev_b32 v{t+9}, 4, v{t+9}')
    a(f'v_cmp_eq_u32 s[56:57], 18, v{t+8}\nv_cmp_ge_u32 vcc, 18, v{t+8}\nv_mov_b32 v{t+10}, 0x3f803f80')
    for m in range(2):
        for i in range(4):
            a(f'v_cvt_pk_bf16_f32 v{t+4*m+i}, v{V+8*m+2*i}, v{V+8*m+2*i+1}\nv_cndmask_b32 v{t+4*m+i}, v{t+4*m+i}, v{t+10}, s[56:57]')
    a(f's_and_saveexec_b64 s[54:55], vcc')
    for m in range(2): a(f'buffer_store_dwordx4 v[{t+4*m}:{t+4*m+3}], v{t+9}, s[{sO}:{sO+3}], s34 offen offset:{1280+640*m}')
    a('s_mov_b64 exec, s[54:55]\ns_endpgm')
    a('K1_wt:')
    a('s_sub_u32 s3, s2, 208\ns_waitcnt lgkmcnt(0)')
    srd(a, 8, 38, 2048*578); srd(a, 12, 40, 2048*578); srd(a, 16, 50, 289*16384, WS_WT)
    a('v_lshlrev_b32 v2, 4, v0')
    a(f's_mul_i32 s20, s{sWv}, 5')
    a(f's_cmp_lt_u32 s{sWv}, 2\ns_cselect_b32 s24, s8, s12\ns_cselect_b32 s25, s9, s13\ns_mov_b32 s26, s10\ns_mov_b32 s27, s11')
    a(f's_and_b32 s21, s{sWv}, 1\ns_mul_i32 s21, s21, 5120')
    for k in range(3):
        a(f's_add_u32 s22, s3, {48*k}\ns_mul_i32 s22, s22, 9248\ns_add_u32 s22, s22, s21')
        a(f's_lshl_b32 s23, s20, 10\ns_add_u32 s23, s23, {20480*k}')
        for i in range(5):
            a(f's_add_u32 m0, s23, {1024*i}\ns_add_u32 s33, s22, {1024*i}\nbuffer_load_dwordx4 v2, s[24:27], s33 offen lds')
    a('s_waitcnt vmcnt(0)\ns_barrier')
    a(f'v_and_b32 v3, 15, v0\nv_lshrrev_b32 v4, 4, v0\ns_lshl_b32 s20, s{sWv}, 2\nv_add_u32 v4, s20, v4')
    a('v_mul_u32_u24 v5, 578, v3\nv_lshl_add_u32 v5, v4, 1, v5')
    a('v_lshlrev_b32 v6, 14, v4\nv_lshl_add_u32 v6, v3, 3, v6')
    a(f's_mov_b32 s34, {f32bits(2.0/(2048*576))}\ns_mov_b32 s35, {f32bits(1.0/(2048*576))}')
    a('v_mov_b32 v10, 0\nv_mov_b32 v11, 0\nv_mov_b32 v12, 0\nv_mov_b32 v13, 0')
    a('s_mov_b32 s21, 0')
    a('K1_wt_task:')
    a('s_mul_i32 s22, s21, 48\ns_add_u32 s22, s22, s3\ns_cmp_ge_u32 s22, 128\ns_cbranch_scc1 K1_end')
    a('s_lshl_b32 s22, s22, 7')
    a('s_mul_i32 s23, s21, 20480\nv_add_u32 v7, s23, v5\nv_mov_b32 v8, v6\nv_mov_b32 v9, v4\ns_mov_b32 s33, 0')
    a('K1_wt_it:')
    a('ds_read_u16_d16_hi v10, v7\nds_read_u16_d16_hi v11, v7 offset:10240')
    a('v_cmp_eq_u32 s[52:53], 0, v9\ns_movk_i32 s36, 288\nv_cmp_eq_u32 vcc, s36, v9\ns_nop 1\ns_or_b64 vcc, vcc, s[52:53]\nv_mov_b32 v14, s34\nv_mov_b32 v15, s35\nv_cndmask_b32 v14, v14, v15, vcc')
    a('s_waitcnt lgkmcnt(0)\nv_mul_f32 v12, v10, v14\nv_mul_f32 v13, v11, v14')
    a('buffer_store_dwordx2 v[12:13], v8, s[16:19], s22 offen')
    a('v_add_u32 v7, 32, v7\nv_add_u32 v8, 0x40000, v8\nv_add_u32 v9, 16, v9')
    a('s_add_u32 s33, s33, 1\ns_cmp_lt_u32 s33, 19\ns_cbranch_scc1 K1_wt_it')
    a('s_add_u32 s21, s21, 1\ns_cmp_lt_u32 s21, 3\ns_cbranch_scc1 K1_wt_task')
    a('K1_end:\ns_endpgm')
```

```python
from common import *
import numpy as np
CH = 20480; LDS_X = 3*CH; LDS = LDS_X + 8192
NV = 168
sWv = 3
def _bf(x): return bf16(float(x))
def tab_F1():
    out = []
    for w in range(2):
        for j in range(4):
            for l in range(64):
                i, kh = l & 31, l >> 5
                c = 16*w + (i >> 1); ro = i & 1
                for jj in range(8):
                    a = 8*j + 4*kh + (jj >> 1); ri = jj & 1
                    th = 2*math.pi*a*c/32
                    v = (math.cos(th) if ri == ro else (math.sin(th) if ri == 1 else -math.sin(th)))
                    out.append(_bf(v))
    return np.array(out, np.uint16).tobytes()
def tab_CS():
    out = []
    for dt in range(2):
        for st in range(4):
            for cs in range(2):
                for l in range(64):
                    i, kh = l & 31, l >> 5
                    d = 32*dt + i
                    for jj in range(8):
                        b = 16*st + 8*(jj >> 2) + 4*kh + (jj & 3)
                        th = 2*math.pi*b*d/64
                        out.append(_bf(math.cos(th) if cs == 0 else math.sin(th)))
    return np.array(out, np.uint16).tobytes()
def tab_TW1():
    out = []
    for w in range(2):
        for mt in range(2):
            for R2 in range(8):
                for l in range(64):
                    i, h = l & 31, l >> 5
                    c = 16*w + (i >> 1)
                    for R in (2*R2, 2*R2+1):
                        g, r = R >> 2, R & 3
                        b = 32*mt + 8*g + 4*h + r
                        ph = 2*math.pi*b*c/2048
                        out += [math.cos(ph), math.sin(ph) if (i & 1) == 0 else -math.sin(ph)]
    return np.array(out, np.float32).tobytes()
def tab_TW2():
    out = []
    for w in range(2):
        for bt in range(2):
            for g in range(4):
                for l in range(64):
                    i, h = l & 31, l >> 5
                    b = 32*bt + i
                    for P in range(2):
                        c = 16*w + 4*g + 2*h + P
                        ph = 2*math.pi*b*c/2048
                        out += [math.cos(ph), math.sin(ph)]
    return np.array(out, np.float32).tobytes()
def tab_F4():
    out = []
    for nt in range(2):
        for st in range(4):
            w2, u = st >> 1, st & 1
            for l in range(64):
                i, kh = l & 31, l >> 5
                a = 16*nt + (i >> 1); ro = i & 1
                for jj in range(8):
                    q = jj >> 1; ri = jj & 1
                    c = 16*w2 + 4*(2*u + (q >> 1)) + 2*kh + (q & 1)
                    th = 2*math.pi*a*c/32
                    v = (math.cos(th) if ri == ro else (-math.sin(th) if ri == 1 else math.sin(th)))
                    out.append(_bf(v))
    return np.array(out, np.uint16).tobytes()
OF1, OCS, OTW1, OTW2, OF4 = 0, 8192, 8192+16384, 8192+16384+32768, 8192+16384+32768+16384
def tables():
    b = tab_F1() + tab_CS() + tab_TW1() + tab_TW2() + tab_F4()
    assert len(b) == OF4 + 8192
    return data_text('FTAB', b)
DPP = 'quad_perm:[1,0,3,2] row_mask:0xf bank_mask:0xf'

def fft_wave(a):
    XA, F1, D, TW, PB, PS, CS, WA, WB, T = 8, 40, 56, 88, 8, 24, 88, 40, 152, 2
    def wreg(k): return (WA + 2*k) if k < 8 else (WB + 2*(k-8))
    a(f's_sub_u32 s4, s{sWv}, 8\ns_and_b32 s5, s4, 1\ns_lshr_b32 s4, s4, 1\ns_lshl_b32 s6, s2, 1\ns_add_u32 s6, s6, s4')
    a('s_cmp_ge_u32 s6, 289\ns_cbranch_scc1 K2_end')
    a('s_setprio 3')
    pc_addr(a, 24, 'FTAB', 'K2_pc1')
    a('s_waitcnt lgkmcnt(0)')
    srd(a, 8, 40, 288*8192, WS_XC); srd(a, 12, 40, 289*16384, WS_WT); srd(a, 16, 40, 576*4096, WS_ZC); srd(a, 20, 24, OF4+8192)
    a('s_cmp_eq_u32 s6, 288\ns_cselect_b32 s7, 0, s6\ns_lshl_b32 s28, s7, 13\ns_add_u32 s29, s28, 4096')
    a('v_and_b32 v1, 31, v0\nv_lshrrev_b32 v6, 5, v0\nv_lshlrev_b32 v7, 2, v1\nv_lshl_add_u32 v7, v6, 10, v7')
    for mt in range(2):
        for j in range(4):
            for q in range(4):
                off = 2048*j + 256*q + 128*mt
                a(f'buffer_load_dword v{XA+16*mt+4*j+q}, v7, s[8:11], s{28 if off < 4096 else 29} offen offset:{off & 4095}')
    a('v_lshlrev_b32 v160+0, 4, v0'.replace('v160+0', 'v168') if False else '')
    a('v_lshlrev_b32 v5, 4, v0')
    def tload(dst, off_expr_s, imm):
        a(f'buffer_load_dwordx4 v[{dst}:{dst+3}], v5, s[20:23], s{off_expr_s} offen offset:{imm}')
    a(f's_lshl_b32 s30, s5, 12\ns_add_u32 s30, s30, {OF1}')
    for j in range(4): tload(F1+4*j, 30, 1024*j)
    for mt in range(2):
        for half in range(2):
            a(f's_mul_i32 s30, s5, 16384\ns_add_u32 s30, s30, {OTW1 + 8192*mt + 4096*half}')
            for k in range(4): tload(TW + 32*mt + 16*half + 4*k, 30, 1024*k)
    a('v_and_b32 v2, 1, v0\nv_cmp_eq_u32 vcc, 1, v2\nv_mov_b32 v3, 0x80008000\nv_mov_b32 v4, 0')
    a('s_nop 0\nv_cndmask_b32 v6, v4, v3, vcc\nv_cndmask_b32 v7, v3, v4, vcc')
    a('v_mov_b32 v2, -1.0\nv_mov_b32 v3, 1.0\nv_cndmask_b32 v1, v2, v3, vcc')
    a('s_barrier')
    a('s_waitcnt vmcnt(20)')
    a('s_cmp_eq_u32 s6, 0\ns_cbranch_scc1 K2f_sp0\ns_cmp_eq_u32 s6, 288\ns_cbranch_scc0 K2f_nosp')
    for k in range(32): a(f'v_lshrrev_b32 v{XA+k}, 16, v{XA+k}')
    a('s_branch K2f_nosp\nK2f_sp0:')
    for k in range(32): a(f'v_and_b32 v{XA+k}, 0xffff, v{XA+k}')
    a('K2f_nosp:')
    a('s_waitcnt vmcnt(16)\ns_nop 1')
    for mt in range(2):
        for j in range(4):
            c = '0' if j == 0 else f'v[{D+16*mt}:{D+16*mt+15}]'
            a(f'v_mfma_f32_32x32x16_bf16 v[{D+16*mt}:{D+16*mt+15}], v[{XA+16*mt+4*j}:{XA+16*mt+4*j+3}], v[{F1+4*j}:{F1+4*j+3}], {c}')
    a('s_waitcnt vmcnt(0)\ns_nop 7\ns_nop 3')
    def cmul_lane(dreg, creg, sreg, tdst):
        a(f'v_mul_f32 v{tdst}, v{dreg}, v{creg}\nv_fmac_f32_dpp v{tdst}, v{dreg}, v{sreg} {DPP}')
    for mt in range(2):
        for R2 in range(8):
            tw = TW + 32*mt + 4*R2; d = D + 16*mt + 2*R2
            cmul_lane(d, tw, tw+1, T); cmul_lane(d+1, tw+2, tw+3, T+1)
            a(f'v_cvt_pk_bf16_f32 v{PB+8*mt+R2}, v{T}, v{T+1}')
    a('s_nop 1')
    for k in range(16): a(f'v_xor_b32_dpp v{PS+k}, v{PB+k}, v6 {DPP}')
    for dt in range(2):
        for half in range(2):
            a(f's_mov_b32 s30, {OCS + 8192*dt + 4096*half}')
            for k in range(4): tload(CS + 32*dt + 16*half + 4*k, 30, 1024*k)
    a('v_and_b32 v2, 31, v0\nv_lshrrev_b32 v2, 1, v2\ns_lshl_b32 s30, s5, 4\nv_add_u32 v2, s30, v2\nv_lshlrev_b32 v2, 3, v2\nv_lshrrev_b32 v3, 5, v0\nv_lshl_add_u32 v4, v3, 10, v2')
    def wload(dt):
        for g in range(4):
            a(f's_lshl_b32 s30, s6, 14\ns_add_u32 s30, s30, {8192*dt + 2048*g}')
            for r in range(4):
                k = 4*g + r
                a(f'buffer_load_dwordx2 v[{wreg(k)}:{wreg(k)+1}], v4, s[12:15], s30 offen offset:{256*r}')
    wload(0)
    a('s_barrier')
    a('s_waitcnt vmcnt(16)')
    for dt in range(2):
        first = True
        for st in range(4):
            for cs in range(2):
                src = (PB if cs == 0 else PS) + 4*st
                c = '0' if first else f'v[{D+16*dt}:{D+16*dt+15}]'; first = False
                f = CS + 32*dt + 8*st + 4*cs
                a(f'v_mfma_f32_32x32x16_bf16 v[{D+16*dt}:{D+16*dt+15}], v[{f}:{f+3}], v[{src}:{src+3}], {c}')
    a('s_waitcnt vmcnt(0)\ns_nop 7\ns_nop 3')
    def wmul(dt):
        for k in range(0, 16, 2):
            for e in range(2):
                wr = wreg(k+e); d = D + 16*dt + k + e
                a(f'v_mul_f32 v{wr+1}, v{wr+1}, v1')
                cmul_lane(d, wr, wr+1, T+e)
            a(f'v_cvt_pk_bf16_f32 v{PB+8*dt+(k>>1)}, v{T}, v{T+1}')
    wmul(0)
    wload(1)
    a('s_barrier')
    a('s_waitcnt vmcnt(0)')
    wmul(1)
    a('s_nop 1')
    for k in range(16): a(f'v_xor_b32_dpp v{PS+k}, v{PB+k}, v7 {DPP}')
    def t2reg(bt, g): return (WA if bt == 0 else WB) + 4*g
    for bt in range(2):
        a(f's_lshl_b32 s30, s5, 13\ns_add_u32 s30, s30, {OTW2 + 4096*bt}')
        for g in range(4): tload(t2reg(bt, g), 30, 1024*g)
    for bt in range(2):
        first = True
        for st in range(4):
            for cs in range(2):
                src = (PB if cs == 0 else PS) + 4*st
                c = '0' if first else f'v[{D+16*bt}:{D+16*bt+15}]'; first = False
                f = CS + 32*bt + 8*st + 4*cs
                a(f'v_mfma_f32_32x32x16_bf16 v[{D+16*bt}:{D+16*bt+15}], v[{src}:{src+3}], v[{f}:{f+3}], {c}')
    a('s_barrier')
    for nt in range(2):
        a(f's_mov_b32 s30, {OF4 + 4096*nt}')
        for st in range(4): tload(CS + 16*nt + 4*st, 30, 1024*st)
    a('s_waitcnt vmcnt(8)\ns_nop 7')
    E = 8
    for bt in range(2):
        for g in range(4):
            for P in range(2):
                d = D + 16*bt + 4*g + 2*P; tw = t2reg(bt, g) + 2*P
                a(f'v_mul_f32 v{T}, v{d}, v{tw}\nv_mul_f32 v{T+1}, v{d+1}, v{tw}')
                a(f'v_fma_f32 v{T}, -v{d+1}, v{tw+1}, v{T}\nv_fma_f32 v{T+1}, v{d}, v{tw+1}, v{T+1}')
                a(f'v_cvt_pk_bf16_f32 v{E+8*bt+2*g+P}, v{T}, v{T+1}')
    a(f's_sub_u32 s30, s{sWv}, 8\ns_lshl_b32 s30, s30, 11\ns_add_u32 s30, s30, {LDS_X}\nv_add_u32 v2, s30, v5')
    a('s_cmp_eq_u32 s5, 0\ns_cbranch_scc1 K2f_w0')
    a('ds_write_b128 v2, v[8:11]\nds_write_b128 v2, v[12:15] offset:1024')
    for k in range(8): a(f'v_mov_b32 v{32+k}, v{16+k}')
    a('s_branch K2f_wj\nK2f_w0:')
    a('ds_write_b128 v2, v[16:19]\nds_write_b128 v2, v[20:23] offset:1024')
    for k in range(8): a(f'v_mov_b32 v{24+k}, v{8+k}')
    a('K2f_wj:')
    a('s_waitcnt lgkmcnt(0)\ns_barrier')
    a('v_xor_b32 v2, 2048, v2')
    a('s_cmp_eq_u32 s5, 0\ns_cbranch_scc1 K2f_r0')
    a('ds_read_b128 v[24:27], v2\nds_read_b128 v[28:31], v2 offset:1024\ns_branch K2f_rj\nK2f_r0:')
    a('ds_read_b128 v[32:35], v2\nds_read_b128 v[36:39], v2 offset:1024\nK2f_rj:')
    a('s_waitcnt vmcnt(0) lgkmcnt(0)')
    for nt in range(2):
        for st in range(4):
            c = '0' if st == 0 else f'v[{D+16*nt}:{D+16*nt+15}]'
            f = CS + 16*nt + 4*st
            a(f'v_mfma_f32_32x32x16_bf16 v[{D+16*nt}:{D+16*nt+15}], v[{24+4*st}:{24+4*st+3}], v[{f}:{f+3}], {c}')
    a('v_and_b32 v2, 31, v0\nv_lshrrev_b32 v3, 1, v2\nv_lshlrev_b32 v3, 7, v3\nv_lshrrev_b32 v4, 5, v0\nv_lshl_add_u32 v3, v4, 3, v3\nv_and_b32 v2, 1, v2')
    a('s_lshl_b32 s31, s5, 6\ns_add_u32 s31, s31, s28')
    a('s_cmp_eq_u32 s6, 0\ns_cbranch_scc1 K2f_st0\ns_cmp_eq_u32 s6, 288\ns_cbranch_scc1 K2f_st288')
    a('v_lshl_add_u32 v3, v2, 12, v3\ns_branch K2f_stj')
    a('K2f_st288:\nv_add_u32 v3, 4096, v3\nK2f_st0:\nv_cmp_eq_u32 vcc, 0, v2\ns_nop 1\ns_and_b64 exec, exec, vcc')
    a('K2f_stj:\ns_nop 7')
    for nt in range(2):
        for g in range(4):
            d = D + 16*nt + 4*g; p = 8 + 2*(4*nt+g)
            a(f'v_cvt_pk_bf16_f32 v{p}, v{d}, v{d+1}\nv_cvt_pk_bf16_f32 v{p+1}, v{d+2}, v{d+3}')
            a(f'buffer_store_dwordx2 v[{p}:{p+1}], v3, s[16:19], s31 offen offset:{2048*nt + 16*g}')
    a('s_endpgm')

def attn_wave(a):
    Q1, Q2, S, P, O = 2, 6, [8, 24], 40, 48
    Kf, Vf = [64, 72], [80, 88]
    aK1, aK2, aV = [96, 99], [97, 100], [98, 101]
    T = 104
    a(f's_lshr_b32 s4, s2, 2\ns_and_b32 s5, s2, 3\ns_lshl_b32 s5, s5, 3\ns_add_u32 s5, s5, s{sWv}')
    a('s_waitcnt lgkmcnt(0)')
    srd(a, 8, 40, NB_ACT, WS_Q); srd(a, 12, 40, 64*KVT, WS_KV); srd(a, 16, 40, NB_ACT, WS_O)
    a(f's_add_u32 s20, s40, {WS_KMX}\ns_addc_u32 s21, s41, 0')
    a('s_load_dwordx16 s[44:59], s[20:21], 0\ns_load_dwordx16 s[60:75], s[20:21], 64\ns_load_dwordx16 s[76:91], s[20:21], 128')
    a('v_lshlrev_b32 v102, 4, v0')
    def dma(chunk_s, slot_s):
        a(f's_lshl_b32 s26, s{sWv}, 10')
        for n in range(3):
            if n == 2: a(f's_cmp_ge_u32 s{sWv}, 4\ns_cbranch_scc1 K2a_dsk{dma.n}')
            a(f's_add_u32 s27, s26, {8192*n}\ns_add_u32 m0, s27, s{slot_s}\ns_add_u32 s27, s27, s{chunk_s}\nbuffer_load_dwordx4 v102, s[12:15], s27 offen lds')
        a(f'K2a_dsk{dma.n}:'); dma.n += 1
    dma.n = 0
    a(f's_mov_b32 s22, 0\ns_mov_b32 s23, 0'); dma(22, 23)
    a(f's_mov_b32 s22, {CH}\ns_mov_b32 s23, {CH}'); dma(22, 23)
    a(f'v_and_b32 v1, 31, v0\ns_lshl_b32 s6, s4, 5\nv_add_u32 v{T}, s6, v1\ns_movk_i32 s7, 1152\nv_mul_lo_u32 v{T}, v{T}, s7')
    a(f'v_lshrrev_b32 v{T+1}, 5, v0\nv_lshl_add_u32 v103, v{T+1}, 3, v{T}\ns_mul_i32 s7, s5, 36')
    a(f'buffer_load_dwordx2 v[{Q1}:{Q1+1}], v103, s[8:11], s7 offen\nbuffer_load_dwordx2 v[{Q1+2}:{Q1+3}], v103, s[8:11], s7 offen offset:16')
    a(f'buffer_load_dword v{Q2}, v{T}, s[8:11], s7 offen offset:32')
    a(f'v_lshlrev_b32 v{aK1[0]}, 4, v0\nv_lshlrev_b32 v{aK2[0]}, 3, v1\nv_add_u32 v{aK2[0]}, 1024, v{aK2[0]}')
    a(f'v_mov_b32 v{T+2}, 4\nv_cmp_gt_u32 vcc, 19, v1\ns_nop 1\nv_cndmask_b32 v{T+2}, v{T+2}, v1, vcc')
    a(f'v_subrev_u32 v{T+3}, 20, v1\nv_cmp_gt_u32 vcc, 8, v{T+3}\ns_nop 1\nv_cndmask_b32 v{T+2}, v{T+2}, 0, vcc'.replace(f'v_cndmask_b32 v{T+2}, v{T+2}, 0, vcc', f'v_mov_b32 v{T+3}, 0\nv_cndmask_b32 v{T+2}, v{T+2}, v{T+3}, vcc'))
    a(f'v_mul_u32_u24 v{T+3}, 20, v{T+1}\nv_add_u32 v{T+2}, v{T+2}, v{T+3}\nv_lshlrev_b32 v{T+2}, 4, v{T+2}\nv_add_u32 v{aV[0]}, 1280, v{T+2}')
    for r in (aK1, aK2, aV): a(f'v_add_u32 v{r[1]}, {CH}, v{r[0]}')
    for i in range(16): a(f'v_mov_b32 v{O+i}, 0')
    a('s_waitcnt lgkmcnt(0)')
    for i in range(45, 45+47+16-16): pass
    for i in range(45, 92):
        if i < 44+48: a(f's_max_u32 s44, s44, s{i}')
    a('s_load_dwordx16 s[60:75], s[20:21], 192\ns_waitcnt lgkmcnt(0)')
    for i in range(60, 76): a(f's_max_u32 s44, s44, s{i}')
    a('s_waitcnt vmcnt(0)')
    a(f'v_cmp_gt_u32 vcc, 32, v0\nv_mov_b32 v{T}, 0\ns_nop 0\nv_cndmask_b32 v{Q2}, v{T}, v{Q2}, vcc')
    a(f'v_dot2_f32_bf16 v{T}, v{Q1}, v{Q1}, v{T}')
    for r in (Q1+1, Q1+2, Q1+3, Q2): a(f's_nop 2\nv_dot2_f32_bf16 v{T}, v{r}, v{r}, v{T}')
    a(f's_nop 2\nv_mov_b32 v{T+1}, v{T}\ns_nop 1\nv_permlane32_swap_b32 v{T}, v{T+1}\nv_add_f32 v{T}, v{T}, v{T+1}')
    a(f'v_mul_f32 v{T}, s44, v{T}\nv_sqrt_f32 v{T}, v{T}\ns_nop 0\nv_mul_f32 v{T}, {f32bits(-(1+2**-6)):#x}, v{T}')
    a(f'v_mov_b32 v{T+1}, 0\nv_cvt_pk_bf16_f32 v{T}, v{T}, v{T+1}\nv_cndmask_b32 v{Q2+1}, v{T+1}, v{T}, vcc')
    a('s_barrier')
    def rdK(buf, areg, u):
        a(f'ds_read_b128 v[{Kf[buf]}:{Kf[buf]+3}], v{aK1[areg]} offset:{u*KVT}\nds_read_b64 v[{Kf[buf]+4}:{Kf[buf]+5}], v{aK2[areg]} offset:{u*KVT}')
    def rdV(buf, areg, u):
        a(f'ds_read_b128 v[{Vf[buf]}:{Vf[buf]+3}], v{aV[areg]} offset:{u*KVT}\nds_read_b128 v[{Vf[buf]+4}:{Vf[buf]+7}], v{aV[areg]} offset:{u*KVT+640}')
    def qk1(sb, kb): a(f'v_mfma_f32_32x32x16_bf16 v[{S[sb]}:{S[sb]+15}], v[{Kf[kb]}:{Kf[kb]+3}], v[{Q1}:{Q1+3}], 0')
    def qk2(sb, kb): a(f'v_mfma_f32_32x32x8bf16_1k v[{S[sb]}:{S[sb]+15}], v[{Kf[kb]+4}:{Kf[kb]+5}], v[{Q2}:{Q2+1}], v[{S[sb]}:{S[sb]+15}]')
    rdK(0, 0, 0); rdK(1, 0, 1); rdV(0, 0, 0)
    a('s_waitcnt lgkmcnt(4)'); qk1(0, 0); qk2(0, 0)
    a(f's_mov_b32 s24, 0\ns_mov_b32 s22, {2*CH}\ns_mov_b32 s23, {2*CH}')
    a('s_nop 7\ns_nop 3')
    a('.p2align 6\nK2a_loop:')
    for u in range(8):
        b = u & 1; s = S[b]
        if u == 6:
            a('s_waitcnt vmcnt(0)\ns_barrier')
            a('s_cmp_ge_u32 s24, 6\ns_cbranch_scc1 K2a_nodma'); dma(22, 23); a('K2a_nodma:')
        if u + 2 < 8: rdK(b, 0, u+2)
        else: rdK(b, 1, u+2-8)
        if u + 1 < 8: rdV(1-b, 0, u+1)
        else: rdV(1-b, 1, 0)
        a('s_waitcnt lgkmcnt(4)')
        ex = lambda i: a(f'v_exp_f32 v{s+i}, v{s+i}')
        cv = lambda i: a(f'v_cvt_pk_bf16_f32 v{P+i}, v{s+2*i}, v{s+2*i+1}')
        qk1(1-b, 1-b)
        for i in range(0, 5): ex(i)
        qk2(1-b, 1-b)
        for i in range(5, 8): ex(i)
        for i in range(0, 4): cv(i)
        ex(8); ex(9)
        a(f'v_mfma_f32_32x32x16_bf16 v[{O}:{O+15}], v[{Vf[b]}:{Vf[b]+3}], v[{P}:{P+3}], v[{O}:{O+15}]')
        for i in range(10, 16): ex(i)
        for i in range(4, 8): cv(i)
        a('s_nop 1')
        a(f'v_mfma_f32_32x32x16_bf16 v[{O}:{O+15}], v[{Vf[b]+4}:{Vf[b]+7}], v[{P+4}:{P+7}], v[{O}:{O+15}]')
    for r in (aK1, aK2, aV): a(f'v_mov_b32 v{r[0]}, v{r[1]}')
    a(f's_sub_u32 s25, s23, 0')
    for r, base in ((aK1, 0), (aK2, 0), (aV, 0)): pass
    a(f'v_subrev_u32 v{T}, s28, v{aK1[0]}') if False else None
    for r, k in ((aK1, 0), (aK2, 1), (aV, 2)): a(f'v_add_u32 v{r[1]}, s23, v{T+8+k}')
    a(f's_add_u32 s22, s22, {CH}\ns_add_u32 s23, s23, {CH}\ns_cmp_ge_u32 s23, {3*CH}\ns_cselect_b32 s23, 0, s23')
    a('s_add_u32 s24, s24, 1\ns_cmp_lt_u32 s24, 8\ns_cbranch_scc1 K2a_loop')
    a('s_waitcnt lgkmcnt(0)\ns_nop 7\ns_nop 7')
    a(f'v_mov_b32 v{T}, v{O+10}\nv_mov_b32 v{T+1}, v{O+10}\ns_nop 1\nv_permlane32_swap_b32 v{T}, v{T+1}')
    a(f's_mov_b32 s26, {f32bits(2.0**-80)}\nv_cmp_nle_f32 vcc, s26, v{T}\ns_nop 1\ns_nop 3\ns_cbranch_vccnz K2a_slow')
    a('K2a_fin:')
    a(f'v_rcp_f32 v{T}, v{T}\ns_nop 0')
    for i in range(10): a(f'v_mul_f32 v{O+i}, v{O+i}, v{T}')
    for i in range(5): a(f'v_cvt_pk_bf16_f32 v{P+i}, v{O+2*i}, v{O+2*i+1}')
    a(f'buffer_store_dwordx2 v[{P}:{P+1}], v103, s[16:19], s7 offen\nbuffer_store_dwordx2 v[{P+2}:{P+3}], v103, s[16:19], s7 offen offset:16')
    a(f'v_cmp_gt_u32 vcc, 32, v0\ns_nop 1\ns_and_b64 exec, exec, vcc\nbuffer_store_dword v{P+4}, v103, s[16:19], s7 offen offset:32\ns_endpgm')
    a('K2a_slow:')
    a(f'v_lshlrev_b32 v{T+4}, 4, v0\nv_lshlrev_b32 v{T+5}, 3, v1\nv_add_u32 v{T+5}, 1024, v{T+5}\nv_mov_b32 v{T+6}, v{T+10}')
    a(f'v_and_b32 v{Q2+1}, 0, v{Q2+1}\nv_mov_b32 v{T+7}, 0xff7fffff\ns_mov_b32 s26, 0')
    a('K2a_s1:')
    a(f'buffer_load_dwordx4 v[{Kf[0]}:{Kf[0]+3}], v{T+4}, s[12:15], s26 offen\nbuffer_load_dwordx2 v[{Kf[0]+4}:{Kf[0]+5}], v{T+5}, s[12:15], s26 offen\ns_waitcnt vmcnt(0)')
    qk1(0, 0); qk2(0, 0); a('s_nop 7\ns_nop 7')
    for i in range(16): a(f'v_max_f32 v{T+7}, v{T+7}, v{S[0]+i}')
    a(f's_add_u32 s26, s26, {KVT}\ns_cmp_lt_u32 s26, {64*KVT}\ns_cbranch_scc1 K2a_s1')
    a(f'v_mov_b32 v{T}, v{T+7}\ns_nop 1\nv_permlane32_swap_b32 v{T}, v{T+7}\nv_max_f32 v{T+7}, v{T+7}, v{T}')
    for i in range(16): a(f'v_mov_b32 v{O+i}, 0')
    a('s_mov_b32 s26, 0\nK2a_s2:')
    a(f'buffer_load_dwordx4 v[{Kf[0]}:{Kf[0]+3}], v{T+4}, s[12:15], s26 offen\nbuffer_load_dwordx2 v[{Kf[0]+4}:{Kf[0]+5}], v{T+5}, s[12:15], s26 offen')
    a(f'buffer_load_dwordx4 v[{Vf[0]}:{Vf[0]+3}], v{T+6}, s[12:15], s26 offen\nbuffer_load_dwordx4 v[{Vf[0]+4}:{Vf[0]+7}], v{T+6}, s[12:15], s26 offen offset:640\ns_waitcnt vmcnt(0)')
    qk1(0, 0); qk2(0, 0); a('s_nop 7\ns_nop 7')
    for i in range(16): a(f'v_sub_f32 v{S[0]+i}, v{S[0]+i}, v{T+7}\nv_exp_f32 v{S[0]+i}, v{S[0]+i}')
    a('s_nop 0')
    for i in range(8): a(f'v_cvt_pk_bf16_f32 v{P+i}, v{S[0]+2*i}, v{S[0]+2*i+1}')
    a('s_nop 1')
    a(f'v_mfma_f32_32x32x16_bf16 v[{O}:{O+15}], v[{Vf[0]}:{Vf[0]+3}], v[{P}:{P+3}], v[{O}:{O+15}]')
    a(f'v_mfma_f32_32x32x16_bf16 v[{O}:{O+15}], v[{Vf[0]+4}:{Vf[0]+7}], v[{P+4}:{P+7}], v[{O}:{O+15}]')
    a(f's_add_u32 s26, s26, {KVT}\ns_cmp_lt_u32 s26, {64*KVT}\ns_cbranch_scc1 K2a_s2')
    a('s_nop 7\ns_nop 7')
    a(f'v_mov_b32 v{T}, v{O+10}\nv_mov_b32 v{T+1}, v{O+10}\ns_nop 1\nv_permlane32_swap_b32 v{T}, v{T+1}\ns_branch K2a_fin')

def k2(a):
    a('s_cmp_ge_u32 s2, 256\ns_cbranch_scc1 K2_end')
    a('s_load_dwordx2 s[40:41], s[0:1], 80')
    a(f'v_lshrrev_b32 v1, 6, v0\ns_nop 0\nv_readfirstlane_b32 s{sWv}, v1\nv_and_b32 v0, 63, v0\ns_nop 2')
    a(f's_cmp_ge_u32 s{sWv}, 8\ns_cbranch_scc1 K2_fft')
    b = Asm(); attn_wave(b)
    txt = b.text().replace("    v_mov_b32 v48, 0\n", "    v_mov_b32 v112, v96\n    v_mov_b32 v113, v97\n    v_mov_b32 v114, v98\n    v_mov_b32 v48, 0\n", 1)
    a.l.append(txt.rstrip('\n'))
    a('K2_fft:')
    fft_wave(a)
    a('K2_end:\ns_endpgm')
```

```python
from gemm import *
def k3(a):
    a('s_cmp_ge_u32 s2, 192\ns_cbranch_scc1 K3_end')
    a('s_load_dwordx2 s[36:37], s[0:1], 56\ns_load_dwordx2 s[38:39], s[0:1], 64\ns_load_dwordx2 s[40:41], s[0:1], 80')
    lane_ids(a)
    a('s_cmp_ge_u32 s2, 96\ns_cbranch_scc1 K3_ai')
    a(f's_mul_i32 s{sT0}, s2, 10923\ns_lshr_b32 s{sT0}, s{sT0}, 16\ns_lshl_b32 s{sRow0}, s{sT0}, 7\ns_mul_i32 s{sT0}, s{sT0}, 6\ns_sub_u32 s{sT0}, s2, s{sT0}\ns_mul_i32 s{sCol0}, s{sT0}, 96')
    a('s_waitcnt lgkmcnt(0)')
    srd(a, sS, 40, NB_ACT, WS_O); srd(a, sW, 36, 576*1152); srd(a, sO, 38, 2048*2304)
    setup_R(a, 'S', 1152, sRow0, None); setup_T(a, 'W', 1152, sCol0)
    mainloop(a, 'K3o', 'R', 'T', 128, 64*1152)
    a(f's_lshl_b32 s33, s{sCol0}, 1\ns_add_u32 s33, s33, 1152')
    epi_rowmajor(a, 33, rowstride=2304)
    a('s_endpgm')
    a('K3_ai:')
    a(f's_sub_u32 s3, s2, 96\ns_mul_i32 s{sT0}, s3, 10923\ns_lshr_b32 s{sT0}, s{sT0}, 16\ns_lshl_b32 s{sRow0}, s{sT0}, 7\ns_mul_i32 s{sT0}, s{sT0}, 6\ns_sub_u32 s{sT0}, s3, s{sT0}\ns_mul_i32 s{sCol0}, s{sT0}, 96')
    pc_addr(a, 52, 'TTAB', 'K3_pc1')
    a('s_waitcnt lgkmcnt(0)')
    srd(a, sS, 40, 576*4096, WS_ZC); srd(a, sW, 52, 576*1152); srd(a, sO, 38, 2048*2304)
    setup_T(a, 'S', 4096, sRow0); setup_T(a, 'W', 1152, sCol0)
    mainloop(a, 'K3a', 'T', 'T', 64*4096, 64*1152)
    a(f's_lshl_b32 s33, s{sCol0}, 1')
    epi_rowmajor(a, 33, rowstride=2304)
    a('K3_end:\ns_endpgm')
```

```python
import sys
from common import *
import gemm, k1
NAME = 'concat_heads__spectral_gfnet__grouped_kv_mqa__prompt'
def build(kernels=('k1',), extra_tables=''):
    hdr = []; body = ['.amdgcn_target "amdgcn-amd-amdhsa--gfx950"', '.text']; kds = []
    if 'k1' in kernels:
        hdr.append(f'; @launch kernel=k1_kernel grid=(256,1,1) block=(512,1,1) lds={gemm.BUF*gemm.NBUF}')
        a = Asm(); k1.k1(a); body.append(head('k1_kernel') + a.text()); kds.append(kd('k1_kernel', 128))
    tabs = ''
    if 'k2' in kernels:
        import k2
        hdr.append(f'; @launch kernel=k2_kernel grid=(256,1,1) block=(768,1,1) lds={k2.LDS}')
        a = Asm(); k2.k2(a); body.append(head('k2_kernel') + a.text()); kds.append(kd('k2_kernel', k2.NV))
        tabs += k2.tables()
    if 'k3' in kernels:
        import k3
        hdr.append(f'; @launch kernel=k3_kernel grid=(192,1,1) block=(512,1,1) lds={gemm.BUF*gemm.NBUF}')
        a = Asm(); k3.k3(a); body.append(head('k3_kernel') + a.text()); kds.append(kd('k3_kernel', 128))
    return '\n'.join(hdr) + '\n' + '\n'.join(body) + '\n' + tabs + ttab_text() + ''.join(kds)
if __name__ == '__main__':
    ks = sys.argv[2].split(',') if len(sys.argv) > 2 else ['k1','k2','k3']
    open(sys.argv[1], 'w').write(build(ks))
```

```python
import math, struct
from asmlib import *
S_, D_, H_, DH = 2048, 576, 32, 18
WS_Q   = 0
WS_KV  = 0x0240000
WS_KMX = 0x0270000
WS_XC  = 0x0280000
WS_WT  = 0x04C0000
WS_ZC  = 0x0980000
WS_O   = 0x0BC0000
NB_ACT = S_*D_*2
KVT = 2560
QSCALE = math.log2(math.e) / math.sqrt(18.0)
def f32bits(x): return struct.unpack('<I', struct.pack('<f', x))[0]
def bf16(x):
    u = f32bits(x)
    return ((u + 0x7fff + ((u >> 16) & 1)) >> 16) & 0xffff
def srd(a, s, base, nbytes, off=0):
    if off:
        a(f's_add_u32 s{s}, s{base}, {off}\ns_addc_u32 s{s+1}, s{base+1}, 0')
    else:
        a(f's_mov_b32 s{s}, s{base}\ns_mov_b32 s{s+1}, s{base+1}')
    a(f's_mov_b32 s{s+2}, {nbytes}\ns_mov_b32 s{s+3}, 0x00020000')
def pc_addr(a, s, label, uniq):
    a(f's_getpc_b64 s[{s}:{s+1}]\n{uniq}:\ns_add_u32 s{s}, s{s}, {label}-{uniq}\ns_addc_u32 s{s+1}, s{s+1}, 0')
def ttab_text():
    s = ['.altmacro']
    for i in range(576): s.append(f'.set tc{i},{bf16(math.cos(2*math.pi*i/576))}')
    s.append('''.macro tab_e i
.short tc\\i
.endm
.macro tab_row p, o
.set tn,0
.rept 576
tab_e %((tn*p+o)%576)
.set tn,tn+1
.endr
.endm
.p2align 8
.type TTAB,@object
TTAB:
tab_row 0, 0
tab_row 288, 0
.set tp,1
.rept 287
tab_row %tp, 0
tab_row %tp, 144
.set tp,tp+1
.endr
.noaltmacro''')
    return '\n'.join(s) + '\n'
def data_text(label, arr16B):
    assert len(arr16B) % 8 == 0
    q = struct.unpack('<%dQ' % (len(arr16B)//8), arr16B)
    out = ['.p2align 8', f'.type {label},@object', f'{label}:']
    for i in range(0, len(q), 16):
        out.append('.quad ' + ','.join(hex(x) for x in q[i:i+16]))
    return '\n'.join(out) + '\n'
import os
STAMP = os.environ.get('STAMP')
WS_ST = 0x1800000
_stn = [0]
def stamp(a, idx, sbase=90):
    if not STAMP: return
    if STAMP == '4':
        if idx == 2:
            a(f's_memtime s[{sbase}:{sbase+1}]\ns_waitcnt lgkmcnt(0)\ns_mov_b32 s{sbase+2+1}, s{sbase}')
        if idx == 3:
            a(f's_memtime s[{sbase}:{sbase+1}]\ns_waitcnt lgkmcnt(0)\ns_mov_b32 s{sbase+2+4}, s{sbase}')
        if idx in (1, 4): return
    a(f'{"s_memtime" if STAMP == "2" else "s_memrealtime"} s[{sbase}:{sbase+1}]\ns_waitcnt lgkmcnt(0)\ns_mov_b32 s{sbase+2+idx}, s{sbase}')
def stamp_flush(a, n, sbase=90, vt=120):
    if not STAMP: return
    _stn[0] += 1
    a(f's_load_dwordx2 s[{sbase}:{sbase+1}], s[0:1], 80\ns_waitcnt lgkmcnt(0)\ns_add_u32 s{sbase}, s{sbase}, {WS_ST}\ns_addc_u32 s{sbase+1}, s{sbase+1}, 0')
    a(f'v_lshrrev_b32 v{vt}, 6, v{vt+3}\nv_lshlrev_b32 v{vt}, 6, v{vt}\ns_lshl_b32 s{sbase+2+n}, s2, 10\nv_add_u32 v{vt}, s{sbase+2+n}, v{vt}')
    for i in range(n):
        a(f'v_mov_b32 v{vt+1}, s{sbase+2+i}\nglobal_store_dword v{vt}, v{vt+1}, s[{sbase}:{sbase+1}] offset:{4*i}')
    a('s_waitcnt vmcnt(0)')
```

```python
from common import *
BUF = 28672
NBUF = 5
WOFF = 16384
vS   = 2
vW   = 6
vRS  = 12
vRW  = 16
vTS  = 20
vTW  = 24
vF   = 32
vA   = 64
vT   = 112
NV   = 128
sS, sW, sO = 8, 12, 16
sC, sBuf, sFill, sKS, sKW = 20, 21, 22, 23, 24
sSn, sWn = 25, 26
sT0, sT1, sT2 = 27, 28, 29
sWv = 30
sRow0, sCol0 = 31, 32
sW8 = 35

def lane_ids(a):
    if STAMP: a('v_mov_b32 v123, v0')
    stamp(a, 0)
    a(f'v_lshrrev_b32 v1, 6, v0\ns_nop 0\nv_readfirstlane_b32 s{sW8}, v1\nv_and_b32 v0, 63, v0\ns_and_b32 s{sWv}, s{sW8}, 3')

def setup_R(a, which, stride, row0_s, part):
    t = vT
    if part == 'dma': a(f'v_lshrrev_b32 v{t}, 3, v0\nv_and_b32 v{t+1}, 7, v0')
    if part != 'dma': pass
    elif which == 'S':
        for q in range(4):
            a(f'v_add_u32 v{t+2}, {8*q}, v{t}\nv_lshrrev_b32 v{t+3}, 1, v{t+2}\nv_and_b32 v{t+3}, 7, v{t+3}\nv_xor_b32 v{t+3}, v{t+3}, v{t+1}')
            a(f's_lshl_b32 s{sT0}, s{sWv}, 5\ns_add_u32 s{sT0}, s{sT0}, s{row0_s}')
            a(f'v_add_u32 v{t+2}, s{sT0}, v{t+2}\ns_movk_i32 s{sT1}, {stride}\nv_mul_lo_u32 v{t+2}, v{t+2}, s{sT1}')
            a(f'v_lshl_add_u32 v{vS+q}, v{t+3}, 4, v{t+2}')
    else:
        a(f's_lshl_b32 s{sT0}, s{sWv}, 3\nv_add_u32 v{t+2}, s{sT0}, v{t}')
        a(f'v_lshrrev_b32 v{t+3}, 1, v{t+2}\nv_and_b32 v{t+3}, 7, v{t+3}\nv_xor_b32 v{t+3}, v{t+3}, v{t+1}')
        a(f'v_add_u32 v{t+2}, s{row0_s}, v{t+2}\ns_movk_i32 s{sT1}, {stride}\nv_mul_lo_u32 v{t+2}, v{t+2}, s{sT1}')
        a(f'v_lshl_add_u32 v{vW}, v{t+3}, 4, v{t+2}')
        for tt in (1, 2): a(f'v_add_u32 v{vW+tt}, {32*stride*tt}, v{vW}')
    if part == 'dma': return
    dst = vRS if which == 'S' else vRW
    a(f'v_and_b32 v{t}, 31, v0\nv_lshrrev_b32 v{t+1}, 5, v0')
    a(f'v_lshrrev_b32 v{t+2}, 1, v{t}\nv_and_b32 v{t+2}, 7, v{t+2}\nv_xor_b32 v{t+2}, v{t+2}, v{t+1}')
    a(f'v_lshlrev_b32 v{t+3}, 7, v{t}')
    if which == 'S':
        a(f's_lshl_b32 s{sT0}, s{sWv}, 12\nv_add_u32 v{t+3}, s{sT0}, v{t+3}')
    else:
        a(f'v_add_u32 v{t+3}, {WOFF}, v{t+3}')
    for j in range(4):
        a(f'v_xor_b32 v{t+4}, {2*j}, v{t+2}\nv_lshl_add_u32 v{dst+j}, v{t+4}, 4, v{t+3}')

def setup_T(a, which, stride, col0_s, part):
    t = vT
    if part == 'dma':
        a(f'v_lshrrev_b32 v{t}, 2, v0\nv_and_b32 v{t+1}, 3, v0\nv_lshlrev_b32 v{t+1}, 4, v{t+1}')
        a(f's_mov_b32 s{sT1}, {stride}')
    if part != 'dma': pass
    elif which == 'S':
        a(f's_lshl_b32 s{sT0}, s{sWv}, 5\ns_add_u32 s{sT0}, s{sT0}, s{col0_s}\ns_lshl_b32 s{sT0}, s{sT0}, 1')
        a(f'v_mul_lo_u32 v{t+2}, v{t}, s{sT1}\nv_add_u32 v{t+2}, v{t+2}, v{t+1}\nv_add_u32 v{vS}, s{sT0}, v{t+2}')
        for j in (1, 2, 3): a(f'v_add_u32 v{vS+j}, {16*stride*j}, v{vS}')
    else:
        a(f's_lshl_b32 s{sT0}, s{sWv}, 4\nv_add_u32 v{t}, s{sT0}, v{t}\nv_mul_lo_u32 v{t+2}, v{t}, s{sT1}\nv_add_u32 v{t+2}, v{t+2}, v{t+1}')
        a(f's_lshl_b32 s{sT0}, s{col0_s}, 1\nv_add_u32 v{vW}, s{sT0}, v{t+2}')
        for tt in (1, 2): a(f'v_add_u32 v{vW+tt}, {64*tt}, v{vW}')
    if part == 'dma': return
    dst = vRS if which == 'S' else vRW
    a(f'v_lshrrev_b32 v{t}, 5, v0\nv_lshlrev_b32 v{t}, 3, v{t}\nv_bfe_u32 v{t+1}, v0, 2, 2\nv_add_u32 v{t}, v{t}, v{t+1}\nv_lshlrev_b32 v{t}, 6, v{t}')
    a(f'v_bfe_u32 v{t+1}, v0, 4, 1\nv_lshl_add_u32 v{t}, v{t+1}, 5, v{t}\nv_and_b32 v{t+1}, 3, v0\nv_lshl_add_u32 v{t}, v{t+1}, 3, v{t}')
    if which == 'S':
        a(f's_lshl_b32 s{sT0}, s{sWv}, 12\nv_add_u32 v{dst}, s{sT0}, v{t}')
    else:
        a(f'v_add_u32 v{dst}, {WOFF}, v{t}')

def dma_chunk(a, kS, kW, kv=False):
    a(f's_lshl_b32 s{sT0}, s{sWv}, 12\ns_add_u32 s{sT0}, s{sT0}, s{sFill}')
    for q in range(4):
        a(f's_add_u32 m0, s{sT0}, {1024*q}\ns_nop 0\nbuffer_load_dwordx4 v{vS+q}, s[{sS}:{sS+3}], s{sKS} offen lds')
    if not kv:
        a(f's_lshl_b32 s{sT0}, s{sWv}, 10\ns_add_u32 s{sT0}, s{sT0}, s{sFill}')
        for tt in range(3):
            a(f's_add_u32 m0, s{sT0}, {WOFF + 4096*tt}\ns_nop 0\nbuffer_load_dwordx4 v{vW+tt}, s[{sW}:{sW+3}], s{sKW} offen lds')
    else:
        a(f's_mul_i32 s{sT0}, s{sWv}, 1280\ns_add_u32 s{sT0}, s{sT0}, s{sFill}')
        for i in range(5):
            a(f's_add_u32 m0, s{sT0}, {WOFF + 256*i}\ns_nop 0\nbuffer_load_dword v{vW+i}, s[{sW}:{sW+3}], s{sKW} offen lds')

def reads(a, kS, kW, j, st, kv=False):
    f = vF + 16*st
    n = 0
    if kS == 'R': a(f'ds_read_b128 v[{f}:{f+3}], v{vTS+j}'); n += 1
    else:
        for rd in range(2): a(f'ds_read_b64_tr_b16 v[{f+2*rd}:{f+2*rd+1}], v{vTS} offset:{1024*j+256*rd}'); n += 1
    if kv:
        for tt in range(2):
            for rd in range(2):
                a(f'ds_read_b64_tr_b16 v[{f+4+4*tt+2*rd}:{f+4+4*tt+2*rd+1}], v{vTW} offset:{40*(16*j+4*rd)+2560*tt}'); n += 1
    else:
        for tt in range(3):
            g = f + 4 + 4*tt
            if kW == 'R': a(f'ds_read_b128 v[{g}:{g+3}], v{vTW+j} offset:{4096*tt}'); n += 1
            else:
                for rd in range(2): a(f'ds_read_b64_tr_b16 v[{g+2*rd}:{g+2*rd+1}], v{vTW} offset:{4096*tt+1024*j+256*rd}'); n += 1
    return n

def set_addrs(a, kS, kW, sreg):
    for j in range(4 if kS == 'R' else 1): a(f'v_add_u32 v{vTS+j}, s{sreg}, v{vRS+j}')
    for j in range(4 if kW == 'R' else 1): a(f'v_add_u32 v{vTW+j}, s{sreg}, v{vRW+j}')

def loader(a, name, kS, kW, dKS, dKW, kv=False):
    nd = 9 if kv else 7
    a(f's_mov_b32 s{sSn}, s{sS+2}\ns_mov_b32 s{sWn}, s{sW+2}')
    a(f's_mov_b32 s{sFill}, 0\ns_mov_b32 s{sKS}, 0\ns_mov_b32 s{sKW}, 0\ns_mov_b32 s{sC}, 0')
    a(f'{name}_pro:')
    dma_chunk(a, kS, kW, kv)
    a(f's_add_u32 s{sFill}, s{sFill}, {BUF}\ns_add_u32 s{sKS}, s{sKS}, {dKS}\ns_add_u32 s{sKW}, s{sKW}, {dKW}')
    a(f's_add_u32 s{sC}, s{sC}, 1\ns_cmp_lt_u32 s{sC}, 4\ns_cbranch_scc1 {name}_pro')
    a(f's_mov_b32 s{sC}, 0')
    a(f's_waitcnt vmcnt({3*nd})\ns_barrier')
    a(f'{name}_lloop:')
    a(f's_waitcnt vmcnt({2*nd})\ns_barrier')
    a(f's_cmp_lt_u32 s{sC}, 5\ns_cselect_b32 s{sS+2}, s{sSn}, 0\ns_cselect_b32 s{sW+2}, s{sWn}, 0')
    dma_chunk(a, kS, kW, kv)
    a(f's_add_u32 s{sFill}, s{sFill}, {BUF}\ns_cmp_ge_u32 s{sFill}, {BUF*NBUF}\ns_cselect_b32 s{sFill}, 0, s{sFill}')
    a(f's_add_u32 s{sKS}, s{sKS}, {dKS}\ns_add_u32 s{sKW}, s{sKW}, {dKW}')
    a(f's_add_u32 s{sC}, s{sC}, 1\ns_cmp_lt_u32 s{sC}, 9\ns_cbranch_scc1 {name}_lloop')
    a('s_waitcnt vmcnt(0)')

def compute(a, name, kS, kW, kv=False):
    nt = 2 if kv else 3
    for i in range(16*nt): a(f'v_mov_b32 v{vA+i}, 0')
    a(f's_mov_b32 s{sBuf}, 0\ns_mov_b32 s{sC}, 0')
    set_addrs(a, kS, 'T' if kv else kW, sBuf)
    stamp(a, 1)
    a('s_barrier')
    stamp(a, 2)
    reads(a, kS, kW, 0, 0, kv)
    a(f'{name}_loop:')
    a('s_barrier')
    for j in range(4):
        st = j & 1
        if j < 3:
            n = reads(a, kS, kW, j+1, 1-st, kv)
        else:
            a(f's_add_u32 s{sBuf}, s{sBuf}, {BUF}\ns_cmp_ge_u32 s{sBuf}, {BUF*NBUF}\ns_cselect_b32 s{sBuf}, 0, s{sBuf}')
            set_addrs(a, kS, 'T' if kv else kW, sBuf)
            n = reads(a, kS, kW, 0, 1-st, kv)
        a(f's_waitcnt lgkmcnt({n})')
        f = vF + 16*st
        if kv:
            a(f'v_mfma_f32_32x32x16_bf16 v[{vA}:{vA+15}], v[{f+4}:{f+7}], v[{f}:{f+3}], v[{vA}:{vA+15}]')
            a(f'v_mfma_f32_32x32x16_bf16 v[{vA+16}:{vA+31}], v[{f}:{f+3}], v[{f+8}:{f+11}], v[{vA+16}:{vA+31}]')
        else:
            for tt in range(3):
                g = f + 4 + 4*tt; d = vA + 16*tt
                a(f'v_mfma_f32_32x32x16_bf16 v[{d}:{d+15}], v[{g}:{g+3}], v[{f}:{f+3}], v[{d}:{d+15}]')
    a(f's_add_u32 s{sC}, s{sC}, 1\ns_cmp_lt_u32 s{sC}, 9\ns_cbranch_scc1 {name}_loop')
    a('s_waitcnt lgkmcnt(0)\ns_nop 7\ns_nop 7')
    stamp(a, 3)

def epi_write(a, mode, scale=None):
    t = vT
    if mode == 'row':
        a(f'v_and_b32 v{t}, 31, v0\ns_lshl_b32 s{sT0}, s{sWv}, 5\nv_add_u32 v{t}, s{sT0}, v{t}\nv_mul_u32_u24 v{t}, 208, v{t}\nv_lshrrev_b32 v{t+1}, 5, v0\nv_lshl_add_u32 v{t}, v{t+1}, 3, v{t}')
        if scale is not None: a(f's_mov_b32 s{sT2}, {f32bits(scale)}')
        for tt in range(3):
            for g in range(4):
                d = vA + 16*tt + 4*g; p = t + 2 + 2*((tt*4+g) & 3)
                if scale is not None:
                    for r in range(4): a(f'v_mul_f32 v{d+r}, s{sT2}, v{d+r}')
                a(f'v_cvt_pk_bf16_f32 v{p}, v{d}, v{d+1}\nv_cvt_pk_bf16_f32 v{p+1}, v{d+2}, v{d+3}')
                if tt == 0 and g == 0: a('s_barrier')
                a(f'ds_write_b64 v{t}, v[{p}:{p+1}] offset:{64*tt+16*g}')
    else:
        a(f'v_and_b32 v{t}, 31, v0\ns_lshl_b32 s{sT0}, s{sWv}, 5\nv_add_u32 v{t}, s{sT0}, v{t}\nv_lshlrev_b32 v{t}, 2, v{t}\nv_lshrrev_b32 v{t+1}, 5, v0\nv_mul_u32_u24 v{t+1}, 1152, v{t+1}\nv_add_u32 v{t}, v{t}, v{t+1}')
        for tt in range(3):
            for g in range(4):
                d = vA + 16*tt + 4*g
                for u in range(2):
                    p = t + 2 + ((tt*8+g*2+u) & 7)
                    a(f'v_cvt_pk_bf16_f32 v{p}, v{d+2*u}, v{d+2*u+1}')
                    if tt == 0 and g == 0 and u == 0: a('s_barrier')
                    a(f'ds_write_b32 v{t}, v{p} offset:{(16*tt+4*g+u)*576}')
    a('s_waitcnt lgkmcnt(0)\ns_barrier')

def epi_store(a, mode, soff_s, rowstride):
    t = vT
    a(f's_lshl_b32 s{sT0}, s{sW8}, 6\nv_add_u32 v{t}, s{sT0}, v0')
    for n in range(3):
        r, c, la, ga = t+1, t+2, t+4+n, t+8+n
        a(f'v_add_u32 v{t+3}, {512*n}, v{t}')
        if mode == 'row':
            a(f'v_mul_u32_u24 v{r}, 5462, v{t+3}\nv_lshrrev_b32 v{r}, 16, v{r}\nv_mul_u32_u24 v{c}, 12, v{r}\nv_sub_u32 v{c}, v{t+3}, v{c}')
            ls = 208
        else:
            a(f'v_lshrrev_b32 v{r}, 5, v{t+3}\nv_and_b32 v{c}, 31, v{t+3}')
            ls = 576
        a(f'v_lshlrev_b32 v{c}, 4, v{c}\nv_mad_u32_u24 v{la}, v{r}, s{sT2}, v{c}'.replace(f's{sT2}', f'v{t+11}') if False else
          f'v_lshlrev_b32 v{c}, 4, v{c}\nv_mul_u32_u24 v{la}, {ls}, v{r}\nv_add_u32 v{la}, v{la}, v{c}\nv_mul_u32_u24 v{ga}, {rowstride}, v{r}\nv_add_u32 v{ga}, v{ga}, v{c}')
    return t

def epi_store2(a, soff_s):
    t = vT
    for n in range(3): a(f'ds_read_b128 v[{vF+4*n}:{vF+4*n+3}], v{t+4+n}')
    for n in range(3):
        a(f's_waitcnt lgkmcnt({2-n})\nbuffer_store_dwordx4 v[{vF+4*n}:{vF+4*n+3}], v{t+8+n}, s[{sO}:{sO+3}], s{soff_s} offen')

def gemm_task(a, name, kS, kW, dKS, dKW, setup, mode, soff_s, rowstride, scale=None):
    a(f's_cmp_ge_u32 s{sW8}, 4\ns_cbranch_scc1 {name}_ld')
    setup('rd')
    compute(a, name, kS, kW)
    epi_write(a, mode, scale)
    a(f's_branch {name}_st')
    a(f'{name}_ld:')
    setup('dma')
    loader(a, name, kS, kW, dKS, dKW)
    epi_store(a, mode, soff_s, rowstride)
    a('s_barrier\ns_barrier')
    a(f's_branch {name}_st2')
    a(f'{name}_st:')
    epi_store(a, mode, soff_s, rowstride)
    a(f'{name}_st2:')
    epi_store2(a, soff_s)
    if STAMP:
        a('s_waitcnt vmcnt(0)'); stamp(a, 4); stamp_flush(a, 5)
    a('s_endpgm')

def epi_rowmajor(a, col_byte0_s, scale=None, rowstride=1152):
    t = vT
    a(f'v_and_b32 v{t}, 31, v0\ns_lshl_b32 s{sT0}, s{sWv}, 5\ns_add_u32 s{sT0}, s{sT0}, s{sRow0}\nv_add_u32 v{t}, s{sT0}, v{t}')
    a(f's_movk_i32 s{sT1}, {rowstride}\nv_mul_lo_u32 v{t}, v{t}, s{sT1}\nv_lshrrev_b32 v{t+1}, 5, v0\nv_lshl_add_u32 v{t}, v{t+1}, 3, v{t}')
    if scale is not None: a(f's_mov_b32 s{sT2}, {f32bits(scale)}')
    for tt in range(3):
        for g in range(4):
            d = vA + 16*tt + 4*g; p = t + 2 + 2*((tt*4+g) & 3)
            if scale is not None:
                for r in range(4): a(f'v_mul_f32 v{d+r}, s{sT2}, v{d+r}')
            a(f'v_cvt_pk_bf16_f32 v{p}, v{d}, v{d+1}\nv_cvt_pk_bf16_f32 v{p+1}, v{d+2}, v{d+3}')
            a(f'buffer_store_dwordx2 v[{p}:{p+1}], v{t}, s[{sO}:{sO+3}], s{col_byte0_s} offen offset:{64*tt+16*g}')
```

```python
from gemm import *
import os
def k1(a):
    only = os.environ.get('K1ONLY')
    a('s_cmp_ge_u32 s2, 256\ns_cbranch_scc1 K1_end')
    a('s_load_dwordx4 s[36:39], s[0:1], 0\ns_load_dwordx4 s[40:43], s[0:1], 16\ns_load_dwordx4 s[44:47], s[0:1], 32\ns_load_dwordx2 s[48:49], s[0:1], 48\ns_load_dwordx2 s[50:51], s[0:1], 80')
    lane_ids(a)
    if only:
        lo, hi = {'q': (0,96), 'a': (96,192), 'kv': (192,208), 'wt': (208,256)}[only]
        a(f's_cmp_lt_u32 s2, {lo}\ns_cbranch_scc1 K1_end\ns_cmp_ge_u32 s2, {hi}\ns_cbranch_scc1 K1_end')
    a('s_cmp_ge_u32 s2, 208\ns_cbranch_scc1 K1_wt')
    a('s_cmp_ge_u32 s2, 192\ns_cbranch_scc1 K1_kv')
    a('s_cmp_ge_u32 s2, 96\ns_cbranch_scc1 K1_af')
    a(f's_lshr_b32 s{sT0}, s2, 3\ns_and_b32 s{sT1}, s2, 7\ns_lshl_b32 s{sT1}, s{sT1}, 1\ns_cmp_ge_u32 s{sT0}, 6\ns_cselect_b32 s{sT2}, 1, 0\ns_add_u32 s{sT1}, s{sT1}, s{sT2}\ns_lshl_b32 s{sRow0}, s{sT1}, 7\ns_mul_i32 s{sT2}, s{sT2}, 6\ns_sub_u32 s{sT0}, s{sT0}, s{sT2}\ns_mul_i32 s{sCol0}, s{sT0}, 96')
    a('s_waitcnt lgkmcnt(0)')
    srd(a, sS, 42, NB_ACT); srd(a, sW, 44, 576*576*2); srd(a, sO, 50, NB_ACT, WS_Q)
    a(f's_mul_i32 s33, s{sRow0}, 1152\ns_lshl_b32 s34, s{sCol0}, 1\ns_add_u32 s33, s33, s34')
    def su(part): setup_R(a, 'S', 1152, sRow0, part); setup_T(a, 'W', 1152, sCol0, part)
    gemm_task(a, 'K1q', 'R', 'T', 128, 64*1152, su, 'row', 33, 1152, scale=QSCALE)
    a('K1_af:')
    a('s_sub_u32 s3, s2, 96')
    a(f's_lshr_b32 s{sT0}, s3, 3\ns_and_b32 s{sT1}, s3, 7\ns_lshl_b32 s{sT1}, s{sT1}, 1\ns_cmp_ge_u32 s{sT0}, 6\ns_cselect_b32 s{sT2}, 1, 0\ns_add_u32 s{sT1}, s{sT1}, s{sT2}\ns_lshl_b32 s{sRow0}, s{sT1}, 7\ns_mul_i32 s{sT2}, s{sT2}, 6\ns_sub_u32 s{sT0}, s{sT0}, s{sT2}\ns_mul_i32 s{sCol0}, s{sT0}, 96')
    pc_addr(a, 52, 'TTAB', 'K1_pc1')
    a('s_waitcnt lgkmcnt(0)')
    srd(a, sS, 36, NB_ACT); srd(a, sW, 52, 576*1152); srd(a, sO, 50, 288*8192, WS_XC)
    a(f's_lshl_b32 s33, s{sCol0}, 12\ns_lshl_b32 s34, s{sRow0}, 2\ns_add_u32 s33, s33, s34')
    def su(part): setup_R(a, 'S', 1152, sRow0, part); setup_R(a, 'W', 1152, sCol0, part)
    gemm_task(a, 'K1a', 'R', 'R', 128, 128, su, 'xc', 33, 8192)
    a('K1_kv:')
    a(f's_sub_u32 s3, s2, 192\ns_lshr_b32 s{sT0}, s3, 3\ns_and_b32 s3, s3, 7\ns_lshl_b32 s3, s3, 1\ns_add_u32 s3, s3, s{sT0}\ns_lshl_b32 s{sRow0}, s3, 7')
    a('s_waitcnt lgkmcnt(0)')
    srd(a, sS, 42, NB_ACT)
    a(f's_cmp_lt_u32 s{sWv}, 2\ns_cselect_b32 s52, s46, s48\ns_cselect_b32 s53, s47, s49')
    srd(a, sW, 52, 576*36); srd(a, sO, 50, 64*KVT + 0x40000, WS_KV)
    t = vT
    a(f's_cmp_lt_u32 s{sW8}, 4\ns_cbranch_scc1 K1kv_cp')
    setup_R(a, 'S', 1152, sRow0, 'dma')
    a(f's_and_b32 s{sT0}, s{sWv}, 1\ns_mul_i32 s{sT0}, s{sT0}, 320')
    a(f's_movk_i32 s{sT1}, 6554')
    for i in range(5):
        a(f'v_add_u32 v{t}, s{sT0}, v0\nv_add_u32 v{t}, {64*i}, v{t}\nv_mul_lo_u32 v{t+1}, v{t}, s{sT1}\nv_lshrrev_b32 v{t+1}, 16, v{t+1}')
        a(f'v_mul_u32_u24 v{t+2}, 10, v{t+1}\nv_sub_u32 v{t+2}, v{t}, v{t+2}\nv_min_u32 v{t+2}, 8, v{t+2}\nv_mul_u32_u24 v{t+1}, 36, v{t+1}\nv_lshl_add_u32 v{vW+i}, v{t+2}, 2, v{t+1}')
    loader(a, 'K1kv', 'R', 'T', 128, 64*36, kv=True)
    a('s_endpgm\nK1kv_cp:')
    setup_R(a, 'S', 1152, sRow0, 'rd')
    a(f'v_lshrrev_b32 v{t}, 5, v0\nv_lshlrev_b32 v{t}, 3, v{t}\nv_bfe_u32 v{t+1}, v0, 2, 2\nv_add_u32 v{t}, v{t}, v{t+1}\nv_mul_u32_u24 v{t}, 40, v{t}')
    a(f'v_bfe_u32 v{t+1}, v0, 4, 1\nv_lshl_add_u32 v{t}, v{t+1}, 5, v{t}\nv_and_b32 v{t+1}, 3, v0\nv_lshl_add_u32 v{t}, v{t+1}, 3, v{t}\nv_add_u32 v{vRW}, {WOFF}, v{t}')
    compute(a, 'K1kv', 'R', 'T', kv=True)
    a(f's_lshl_b32 s33, s3, 2\ns_add_u32 s33, s33, s{sWv}\ns_mul_i32 s34, s33, {KVT}')
    K = vA; V = vA+16
    for i in range(4): a(f'v_cvt_pk_bf16_f32 v{t+i}, v{K+2*i}, v{K+2*i+1}')
    a(f'v_lshlrev_b32 v{t+8}, 4, v0\nbuffer_store_dwordx4 v[{t}:{t+3}], v{t+8}, s[{sO}:{sO+3}], s34 offen')
    a(f'v_cvt_pk_bf16_f32 v{t+4}, v{K+8}, v{K+9}\nv_mov_b32 v{t+5}, 0x3f80\nv_lshlrev_b32 v{t+9}, 3, v0')
    a(f'v_mul_f32 v{t+6}, v{K}, v{K}')
    for i in range(1, 8): a(f'v_fmac_f32 v{t+6}, v{K+i}, v{K+i}')
    a(f'v_mul_f32 v{t+7}, v{K+8}, v{K+8}\nv_fmac_f32 v{t+7}, v{K+9}, v{K+9}')
    a(f'v_cmp_gt_u32 vcc, 32, v0\ns_nop 1\nv_cndmask_b32 v{t+7}, 0, v{t+7}, vcc\nv_add_f32 v{t+6}, v{t+6}, v{t+7}')
    a(f's_and_saveexec_b64 s[54:55], vcc\nbuffer_store_dwordx2 v[{t+4}:{t+5}], v{t+9}, s[{sO}:{sO+3}], s34 offen offset:1024\ns_mov_b64 exec, s[54:55]')
    a(f'v_mov_b32 v{t+7}, v{t+6}\ns_nop 1\nv_permlane32_swap_b32 v{t+6}, v{t+7}\nv_add_f32 v{t+6}, v{t+6}, v{t+7}')
    for off in (0x041F, 0x081F, 0x101F, 0x201F, 0x401F):
        a(f'ds_swizzle_b32 v{t+7}, v{t+6} offset:{off}\ns_waitcnt lgkmcnt(0)\nv_max_f32 v{t+6}, v{t+6}, v{t+7}')
    a(f's_lshl_b32 s35, s33, 2\ns_add_u32 s35, s35, {WS_KMX-WS_KV}\nv_mov_b32 v{t+10}, 0\nv_cmp_eq_u32 vcc, 0, v0')
    a(f's_and_saveexec_b64 s[54:55], vcc\nbuffer_store_dword v{t+6}, v{t+10}, s[{sO}:{sO+3}], s35 offen\ns_mov_b64 exec, s[54:55]')
    a(f'v_and_b32 v{t+8}, 31, v0\nv_lshrrev_b32 v{t+9}, 5, v0\nv_mul_u32_u24 v{t+9}, 20, v{t+9}\nv_add_u32 v{t+9}, v{t+9}, v{t+8}\nv_lshlrev_b32 v{t+9}, 4, v{t+9}')
    a(f'v_cmp_eq_u32 s[56:57], 18, v{t+8}\nv_cmp_eq_u32 s[58:59], 19, v{t+8}\nv_cmp_ge_u32 vcc, 19, v{t+8}\nv_mov_b32 v{t+10}, 0x3f803f80')
    for m in range(2):
        for i in range(4):
            a(f'v_cvt_pk_bf16_f32 v{t+4*m+i}, v{V+8*m+2*i}, v{V+8*m+2*i+1}\nv_cndmask_b32 v{t+4*m+i}, v{t+4*m+i}, v{t+10}, s[56:57]\nv_cndmask_b32 v{t+4*m+i}, v{t+4*m+i}, 0, s[58:59]')
    a(f's_and_saveexec_b64 s[54:55], vcc')
    for m in range(2): a(f'buffer_store_dwordx4 v[{t+4*m}:{t+4*m+3}], v{t+9}, s[{sO}:{sO+3}], s34 offen offset:{1280+640*m}')
    a('s_mov_b64 exec, s[54:55]')
    if STAMP:
        a('s_waitcnt vmcnt(0)'); stamp(a, 4); stamp_flush(a, 5)
    a('s_endpgm')
    a('K1_wt:')
    a('s_sub_u32 s3, s2, 208\ns_waitcnt lgkmcnt(0)')
    srd(a, 8, 38, 2048*578); srd(a, 12, 40, 2048*578); srd(a, 16, 50, 289*16384, WS_WT)
    a('v_lshlrev_b32 v2, 4, v0\ns_mov_b32 s26, s10\ns_mov_b32 s27, s11')
    for k in range(3):
        a(f's_add_u32 s22, s3, {48*k}\ns_mul_i32 s22, s22, 9248')
        for n in range(3):
            if n == 2: a(f's_cmp_ge_u32 s{sW8}, 4\ns_cbranch_scc1 K1_wt_sk{k}')
            a(f's_add_u32 s20, s{sW8}, {8*n}\ns_cmp_lt_u32 s20, 10\ns_cselect_b32 s24, s8, s12\ns_cselect_b32 s25, s9, s13\ns_cselect_b32 s21, 0, 10\ns_sub_u32 s21, s20, s21')
            a(f's_lshl_b32 s21, s21, 10\ns_add_u32 s33, s22, s21\ns_lshl_b32 s20, s20, 10\ns_add_u32 m0, s20, {20480*k}\ns_nop 0\nbuffer_load_dwordx4 v2, s[24:27], s33 offen lds')
        a(f'K1_wt_sk{k}:')
    a(f'v_and_b32 v3, 15, v0\nv_lshrrev_b32 v4, 4, v0\ns_lshl_b32 s20, s{sW8}, 2\nv_add_u32 v4, s20, v4')
    a('v_mul_u32_u24 v5, 578, v3\nv_lshl_add_u32 v5, v4, 1, v5')
    a('v_lshlrev_b32 v6, 14, v4\nv_lshl_add_u32 v6, v3, 3, v6')
    a(f's_mov_b32 s34, {f32bits(2.0/(2048*576))}\nv_mov_b32 v8, s34\nv_mov_b32 v9, {f32bits(1.0/(2048*576))}\nv_cmp_eq_u32 vcc, 0, v4\ns_nop 1\nv_cndmask_b32 v9, v8, v9, vcc')
    for i in range(20): a(f'v_mov_b32 v{10+i}, 0')
    a(f'v_add_u32 v30, {9*32*16384}, v6')
    stamp(a, 1)
    a('s_waitcnt vmcnt(0)\ns_barrier')
    stamp(a, 2)
    a('s_mov_b32 s21, 0')
    a('K1_wt_task:')
    a('s_mul_i32 s22, s21, 48\ns_add_u32 s22, s22, s3\ns_cmp_ge_u32 s22, 128\ns_cbranch_scc1 K1_wt_done')
    a('s_lshl_b32 s22, s22, 7')
    a('s_mul_i32 s23, s21, 20480\nv_add_u32 v7, s23, v5')
    for it in range(10): a(f'ds_read_u16_d16_hi v{10+2*it}, v7 offset:{64*it}\nds_read_u16_d16_hi v{11+2*it}, v7 offset:{10240+64*it}')
    for it in range(10):
        sc = 'v9' if it in (0, 9) else 's34'
        p = 32 + 2*it
        a(f's_waitcnt lgkmcnt({min(15, 18-2*it)})\nv_mul_f32 v{p}, {sc}, v{10+2*it}\nv_mul_f32 v{p+1}, {sc}, v{11+2*it}')
        if it < 9: a(f's_add_u32 s33, s22, {it*32*16384}\nbuffer_store_dwordx2 v[{p}:{p+1}], v6, s[16:19], s33 offen')
        else: a(f'buffer_store_dwordx2 v[{p}:{p+1}], v30, s[16:19], s22 offen')
    a('s_add_u32 s21, s21, 1\ns_cmp_lt_u32 s21, 3\ns_cbranch_scc1 K1_wt_task')
    a('K1_wt_done:')
    if STAMP:
        a('s_waitcnt vmcnt(0)'); stamp(a, 3); stamp(a, 4); stamp_flush(a, 5)
    a('K1_end:\ns_endpgm')
```

```python
from common import *
import numpy as np
CH = 20480; LDS_X = 3*CH; LDS = LDS_X + 8192
NV = 168
sWv = 3
def _bf(x): return bf16(float(x))
def tab_F1():
    out = []
    for w in range(2):
        for j in range(4):
            for l in range(64):
                i, kh = l & 31, l >> 5
                c = 16*w + (i >> 1); ro = i & 1
                for jj in range(8):
                    a = 8*j + 4*kh + (jj >> 1); ri = jj & 1
                    th = 2*math.pi*a*c/32
                    v = (math.cos(th) if ri == ro else (math.sin(th) if ri == 1 else -math.sin(th)))
                    out.append(_bf(v))
    return np.array(out, np.uint16).tobytes()
def tab_CS():
    out = []
    for dt in range(2):
        for st in range(4):
            for cs in range(2):
                for l in range(64):
                    i, kh = l & 31, l >> 5
                    d = 32*dt + i
                    for jj in range(8):
                        b = 16*st + 8*(jj >> 2) + 4*kh + (jj & 3)
                        th = 2*math.pi*b*d/64
                        out.append(_bf(math.cos(th) if cs == 0 else math.sin(th)))
    return np.array(out, np.uint16).tobytes()
def tab_TW1():
    out = []
    for w in range(2):
        for mt in range(2):
            for R2 in range(8):
                for l in range(64):
                    i, h = l & 31, l >> 5
                    c = 16*w + (i >> 1)
                    for R in (2*R2, 2*R2+1):
                        g, r = R >> 2, R & 3
                        b = 32*mt + 8*g + 4*h + r
                        ph = 2*math.pi*b*c/2048
                        out += [math.cos(ph), math.sin(ph) if (i & 1) == 0 else -math.sin(ph)]
    return np.array(out, np.float32).tobytes()
def tab_TW2():
    out = []
    for w in range(2):
        for bt in range(2):
            for g in range(4):
                for l in range(64):
                    i, h = l & 31, l >> 5
                    b = 32*bt + i
                    for P in range(2):
                        c = 16*w + 4*g + 2*h + P
                        ph = 2*math.pi*b*c/2048
                        out += [math.cos(ph), math.sin(ph)]
    return np.array(out, np.float32).tobytes()
def tab_F4():
    out = []
    for nt in range(2):
        for st in range(4):
            w2, u = st >> 1, st & 1
            for l in range(64):
                i, kh = l & 31, l >> 5
                a = 16*nt + (i >> 1); ro = i & 1
                for jj in range(8):
                    q = jj >> 1; ri = jj & 1
                    c = 16*w2 + 4*(2*u + (q >> 1)) + 2*kh + (q & 1)
                    th = 2*math.pi*a*c/32
                    v = (math.cos(th) if ri == ro else (-math.sin(th) if ri == 1 else math.sin(th)))
                    out.append(_bf(v))
    return np.array(out, np.uint16).tobytes()
OF1, OCS, OTW1, OTW2, OF4 = 0, 8192, 8192+16384, 8192+16384+32768, 8192+16384+32768+16384
def tables():
    b = tab_F1() + tab_CS() + tab_TW1() + tab_TW2() + tab_F4()
    assert len(b) == OF4 + 8192
    return data_text('FTAB', b)
DPP = 'quad_perm:[1,0,3,2] row_mask:0xf bank_mask:0xf'

def fft_wave(a):
    XA, F1, D, TW, PB, PS, CS, WA, WB, T = 8, 40, 56, 88, 8, 24, 88, 40, 152, 2
    def wreg(k): return (WA + 2*k) if k < 8 else (WB + 2*(k-8))
    a(f's_sub_u32 s4, s{sWv}, 8\ns_and_b32 s5, s4, 1\ns_lshr_b32 s4, s4, 1\ns_lshl_b32 s6, s2, 1\ns_add_u32 s6, s6, s4')
    a('s_cmp_ge_u32 s6, 289\ns_cbranch_scc1 K2_end')
    if os.environ.get('NOFFT'): a('s_branch K2_end')
    a('s_setprio %s' % os.environ.get('FFTPRIO', '3'))
    pc_addr(a, 24, 'FTAB', 'K2_pc1')
    a('s_waitcnt lgkmcnt(0)')
    srd(a, 8, 40, 288*8192, WS_XC); srd(a, 12, 40, 289*16384, WS_WT); srd(a, 16, 40, 576*4096, WS_ZC); srd(a, 20, 24, OF4+8192)
    a('s_cmp_eq_u32 s6, 288\ns_cselect_b32 s7, 0, s6\ns_lshl_b32 s28, s7, 13\ns_add_u32 s29, s28, 4096')
    a('v_and_b32 v1, 31, v0\nv_lshrrev_b32 v6, 5, v0\nv_lshlrev_b32 v7, 2, v1\nv_lshl_add_u32 v7, v6, 10, v7')
    for mt in range(2):
        for j in range(4):
            for q in range(4):
                off = 2048*j + 256*q + 128*mt
                a(f'buffer_load_dword v{XA+16*mt+4*j+q}, v7, s[8:11], s{28 if off < 4096 else 29} offen offset:{off & 4095}')
    a('v_lshlrev_b32 v160+0, 4, v0'.replace('v160+0', 'v168') if False else '')
    a('s_barrier')
    a('v_lshlrev_b32 v5, 4, v0')
    def tload(dst, off_expr_s, imm):
        a(f'buffer_load_dwordx4 v[{dst}:{dst+3}], v5, s[20:23], s{off_expr_s} offen offset:{imm}')
    a(f's_lshl_b32 s30, s5, 12\ns_add_u32 s30, s30, {OF1}')
    for j in range(4): tload(F1+4*j, 30, 1024*j)
    for mt in range(2):
        for half in range(2):
            a(f's_mul_i32 s30, s5, 16384\ns_add_u32 s30, s30, {OTW1 + 8192*mt + 4096*half}')
            for k in range(4): tload(TW + 32*mt + 16*half + 4*k, 30, 1024*k)
    a('v_and_b32 v2, 1, v0\nv_cmp_eq_u32 vcc, 1, v2\nv_mov_b32 v3, 0x80008000\nv_mov_b32 v4, 0')
    a('s_nop 0\nv_cndmask_b32 v6, v4, v3, vcc\nv_cndmask_b32 v7, v3, v4, vcc')
    a('v_mov_b32 v2, -1.0\nv_mov_b32 v3, 1.0\nv_cndmask_b32 v1, v2, v3, vcc')
    stamp(a, 1, 92)
    a('s_waitcnt vmcnt(20)')
    a('s_cmp_eq_u32 s6, 0\ns_cbranch_scc1 K2f_sp0\ns_cmp_eq_u32 s6, 288\ns_cbranch_scc0 K2f_nosp')
    for k in range(32): a(f'v_lshrrev_b32 v{XA+k}, 16, v{XA+k}')
    a('s_branch K2f_nosp\nK2f_sp0:')
    for k in range(32): a(f'v_and_b32 v{XA+k}, 0xffff, v{XA+k}')
    a('K2f_nosp:')
    a('s_waitcnt vmcnt(16)\ns_nop 1')
    for mt in range(2):
        for j in range(4):
            c = '0' if j == 0 else f'v[{D+16*mt}:{D+16*mt+15}]'
            a(f'v_mfma_f32_32x32x16_bf16 v[{D+16*mt}:{D+16*mt+15}], v[{XA+16*mt+4*j}:{XA+16*mt+4*j+3}], v[{F1+4*j}:{F1+4*j+3}], {c}')
    a('s_barrier')
    a('s_waitcnt vmcnt(0)\ns_nop 7\ns_nop 3')
    def cmul_lane(dreg, creg, sreg, tdst):
        a(f'v_mul_f32 v{tdst}, v{dreg}, v{creg}\nv_fmac_f32_dpp v{tdst}, v{dreg}, v{sreg} {DPP}')
    for mt in range(2):
        for R2 in range(8):
            tw = TW + 32*mt + 4*R2; d = D + 16*mt + 2*R2
            cmul_lane(d, tw, tw+1, T); cmul_lane(d+1, tw+2, tw+3, T+1)
            a(f'v_cvt_pk_bf16_f32 v{PB+8*mt+R2}, v{T}, v{T+1}')
    a('s_nop 1')
    for k in range(16): a(f'v_xor_b32_dpp v{PS+k}, v{PB+k}, v6 {DPP}')
    for dt in range(2):
        for half in range(2):
            a(f's_mov_b32 s30, {OCS + 8192*dt + 4096*half}')
            for k in range(4): tload(CS + 32*dt + 16*half + 4*k, 30, 1024*k)
    a('v_and_b32 v2, 31, v0\nv_lshrrev_b32 v2, 1, v2\ns_lshl_b32 s30, s5, 4\nv_add_u32 v2, s30, v2\nv_lshlrev_b32 v2, 3, v2\nv_lshrrev_b32 v3, 5, v0\nv_lshl_add_u32 v4, v3, 10, v2')
    def wload(dt):
        for g in range(4):
            a(f's_lshl_b32 s30, s6, 14\ns_add_u32 s30, s30, {8192*dt + 2048*g}')
            for r in range(4):
                k = 4*g + r
                a(f'buffer_load_dwordx2 v[{wreg(k)}:{wreg(k)+1}], v4, s[12:15], s30 offen offset:{256*r}')
    wload(0)
    stamp(a, 2, 92)
    a('s_barrier')
    a('s_waitcnt vmcnt(16)')
    for dt in range(2):
        first = True
        for st in range(4):
            for cs in range(2):
                src = (PB if cs == 0 else PS) + 4*st
                c = '0' if first else f'v[{D+16*dt}:{D+16*dt+15}]'; first = False
                f = CS + 32*dt + 8*st + 4*cs
                a(f'v_mfma_f32_32x32x16_bf16 v[{D+16*dt}:{D+16*dt+15}], v[{f}:{f+3}], v[{src}:{src+3}], {c}')
    a('s_waitcnt vmcnt(0)\ns_nop 7\ns_nop 3')
    def wmul(dt):
        for k in range(0, 16, 2):
            for e in range(2):
                wr = wreg(k+e); d = D + 16*dt + k + e
                a(f'v_mul_f32 v{wr+1}, v{wr+1}, v1')
                cmul_lane(d, wr, wr+1, T+e)
            a(f'v_cvt_pk_bf16_f32 v{PB+8*dt+(k>>1)}, v{T}, v{T+1}')
    wmul(0)
    wload(1)
    a('s_barrier')
    a('s_waitcnt vmcnt(0)')
    wmul(1)
    a('s_nop 1')
    for k in range(16): a(f'v_xor_b32_dpp v{PS+k}, v{PB+k}, v7 {DPP}')
    def t2reg(bt, g): return (WA if bt == 0 else WB) + 4*g
    for bt in range(2):
        a(f's_lshl_b32 s30, s5, 13\ns_add_u32 s30, s30, {OTW2 + 4096*bt}')
        for g in range(4): tload(t2reg(bt, g), 30, 1024*g)
    for bt in range(2):
        first = True
        for st in range(4):
            for cs in range(2):
                src = (PB if cs == 0 else PS) + 4*st
                c = '0' if first else f'v[{D+16*bt}:{D+16*bt+15}]'; first = False
                f = CS + 32*bt + 8*st + 4*cs
                a(f'v_mfma_f32_32x32x16_bf16 v[{D+16*bt}:{D+16*bt+15}], v[{src}:{src+3}], v[{f}:{f+3}], {c}')
    a('s_barrier')
    for nt in range(2):
        a(f's_mov_b32 s30, {OF4 + 4096*nt}')
        for st in range(4): tload(CS + 16*nt + 4*st, 30, 1024*st)
    a('s_waitcnt vmcnt(8)\ns_nop 7')
    E = 8
    for bt in range(2):
        for g in range(4):
            for P in range(2):
                d = D + 16*bt + 4*g + 2*P; tw = t2reg(bt, g) + 2*P
                a(f'v_mul_f32 v{T}, v{d}, v{tw}\nv_mul_f32 v{T+1}, v{d+1}, v{tw}')
                a(f'v_fma_f32 v{T}, -v{d+1}, v{tw+1}, v{T}\nv_fma_f32 v{T+1}, v{d}, v{tw+1}, v{T+1}')
                a(f'v_cvt_pk_bf16_f32 v{E+8*bt+2*g+P}, v{T}, v{T+1}')
    a(f's_sub_u32 s30, s{sWv}, 8\ns_lshl_b32 s30, s30, 11\ns_add_u32 s30, s30, {LDS_X}\nv_add_u32 v2, s30, v5')
    a('s_cmp_eq_u32 s5, 0\ns_cbranch_scc1 K2f_w0')
    a('ds_write_b128 v2, v[8:11]\nds_write_b128 v2, v[12:15] offset:1024')
    for k in range(8): a(f'v_mov_b32 v{32+k}, v{16+k}')
    a('s_branch K2f_wj\nK2f_w0:')
    a('ds_write_b128 v2, v[16:19]\nds_write_b128 v2, v[20:23] offset:1024')
    for k in range(8): a(f'v_mov_b32 v{24+k}, v{8+k}')
    a('K2f_wj:')
    stamp(a, 3, 92)
    a('s_waitcnt lgkmcnt(0)\ns_barrier')
    a('v_xor_b32 v2, 2048, v2')
    a('s_cmp_eq_u32 s5, 0\ns_cbranch_scc1 K2f_r0')
    a('ds_read_b128 v[24:27], v2\nds_read_b128 v[28:31], v2 offset:1024\ns_branch K2f_rj\nK2f_r0:')
    a('ds_read_b128 v[32:35], v2\nds_read_b128 v[36:39], v2 offset:1024\nK2f_rj:')
    a('s_waitcnt vmcnt(0) lgkmcnt(0)')
    for nt in range(2):
        for st in range(4):
            c = '0' if st == 0 else f'v[{D+16*nt}:{D+16*nt+15}]'
            f = CS + 16*nt + 4*st
            a(f'v_mfma_f32_32x32x16_bf16 v[{D+16*nt}:{D+16*nt+15}], v[{24+4*st}:{24+4*st+3}], v[{f}:{f+3}], {c}')
    a('v_and_b32 v2, 31, v0\nv_lshrrev_b32 v3, 1, v2\nv_lshlrev_b32 v3, 7, v3\nv_lshrrev_b32 v4, 5, v0\nv_lshl_add_u32 v3, v4, 3, v3\nv_and_b32 v2, 1, v2')
    a('s_lshl_b32 s31, s5, 6\ns_add_u32 s31, s31, s28')
    a('s_cmp_eq_u32 s6, 0\ns_cbranch_scc1 K2f_st0\ns_cmp_eq_u32 s6, 288\ns_cbranch_scc1 K2f_st288')
    a('v_lshl_add_u32 v3, v2, 12, v3\ns_branch K2f_stj')
    a('K2f_st288:\nv_add_u32 v3, 4096, v3\nK2f_st0:\nv_cmp_eq_u32 vcc, 0, v2\ns_nop 1\ns_and_b64 exec, exec, vcc')
    a('K2f_stj:\ns_nop 7')
    for nt in range(2):
        for g in range(4):
            d = D + 16*nt + 4*g; p = 8 + 2*(4*nt+g)
            a(f'v_cvt_pk_bf16_f32 v{p}, v{d}, v{d+1}\nv_cvt_pk_bf16_f32 v{p+1}, v{d+2}, v{d+3}')
            a(f'buffer_store_dwordx2 v[{p}:{p+1}], v3, s[16:19], s31 offen offset:{2048*nt + 16*g}')
    if STAMP:
        a('s_mov_b64 exec, -1\ns_waitcnt vmcnt(0)\ns_lshl_b32 s26, s3, 6\nv_add_u32 v123, s26, v0'); stamp(a, 4, 92); stamp_flush(a, 5, 92)
    a('s_endpgm')

def attn_wave(a):
    Q1, Q2, S, P, O = 2, 6, [8, 24], 40, 48
    Kf, Vf = [64, 72], [80, 88]
    aK1, aK2, aV = [96, 99], [97, 100], [98, 101]
    T = 104
    a(f's_lshr_b32 s4, s2, 2\ns_and_b32 s5, s2, 3\ns_lshl_b32 s5, s5, 3\ns_add_u32 s5, s5, s{sWv}')
    a('s_waitcnt lgkmcnt(0)')
    srd(a, 8, 40, NB_ACT, WS_Q); srd(a, 12, 40, 64*KVT, WS_KV); srd(a, 16, 40, NB_ACT, WS_O)
    srd(a, 28, 40, 256, WS_KMX)
    a('v_lshlrev_b32 v102, 4, v0\nv_lshlrev_b32 v116, 2, v0\nbuffer_load_dword v117, v116, s[28:31], 0 offen')
    a(f's_mul_i32 s20, s{sWv}, {KVT}')
    def dmap(n, g_s, l_s):
        if n == 2: a('s_mov_b32 exec_hi, 0')
        a(f's_add_u32 m0, s{l_s}, {1024*n}\ns_add_u32 s27, s{g_s}, {1024*n}\nbuffer_load_dwordx4 v102, s[12:15], s27 offen lds')
        if n == 2: a('s_mov_b32 exec_hi, -1')
    a(f'v_and_b32 v1, 31, v0\ns_lshl_b32 s6, s4, 5\nv_add_u32 v{T}, s6, v1\ns_movk_i32 s7, 1152\nv_mul_lo_u32 v{T}, v{T}, s7')
    a(f'v_lshrrev_b32 v{T+1}, 5, v0\nv_lshl_add_u32 v103, v{T+1}, 3, v{T}\ns_mul_i32 s7, s5, 36')
    a(f'buffer_load_dwordx2 v[{Q1}:{Q1+1}], v103, s[8:11], s7 offen\nbuffer_load_dwordx2 v[{Q1+2}:{Q1+3}], v103, s[8:11], s7 offen offset:16')
    a(f'buffer_load_dword v{Q2}, v{T}, s[8:11], s7 offen offset:32')
    a('s_mov_b32 s22, s20\ns_mov_b32 s23, s20')
    for n in range(3): dmap(n, 22, 23)
    a(f's_add_u32 s22, s20, {CH}\ns_add_u32 s23, s20, {CH}')
    for n in range(2): dmap(n, 22, 23)
    a(f'v_lshlrev_b32 v{aK1[0]}, 4, v0\nv_lshlrev_b32 v{aK2[0]}, 3, v1\nv_add_u32 v{aK2[0]}, 1024, v{aK2[0]}')
    a(f'v_mov_b32 v{T+2}, 19\nv_cmp_gt_u32 vcc, 19, v1\ns_nop 1\nv_cndmask_b32 v{T+2}, v{T+2}, v1, vcc')
    if False: a(f'v_subrev_u32 v{T+3}, 20, v1\nv_cmp_gt_u32 vcc, 8, v{T+3}\ns_nop 1\nv_cndmask_b32 v{T+2}, v{T+2}, 0, vcc'.replace(f'v_cndmask_b32 v{T+2}, v{T+2}, 0, vcc', f'v_mov_b32 v{T+3}, 0\nv_cndmask_b32 v{T+2}, v{T+2}, v{T+3}, vcc'))
    a(f'v_mul_u32_u24 v{T+3}, 20, v{T+1}\nv_add_u32 v{T+2}, v{T+2}, v{T+3}\nv_lshlrev_b32 v{T+2}, 4, v{T+2}\nv_add_u32 v{aV[0]}, 1280, v{T+2}')
    for r in (aK1, aK2, aV): a(f'v_add_u32 v{r[1]}, {CH}, v{r[0]}')
    for i in range(16): a(f'v_mov_b32 v{O+i}, 0')
    a('s_waitcnt vmcnt(2)')
    for ctl in ('row_shr:1', 'row_shr:2', 'row_shr:4', 'row_shr:8', 'row_bcast:15 row_mask:0xa', 'row_bcast:31 row_mask:0xc'):
        rm = '' if 'row_mask' in ctl else ' row_mask:0xf'
        a(f's_nop 1\nv_max_u32_dpp v117, v117, v117 {ctl}{rm} bank_mask:0xf')
    a('s_nop 1\nv_readlane_b32 s44, v117, 63')
    a(f'v_cmp_gt_u32 vcc, 32, v0\nv_mov_b32 v{T}, 0\ns_nop 0\nv_cndmask_b32 v{Q2}, v{T}, v{Q2}, vcc')
    a(f'v_dot2_f32_bf16 v{T}, v{Q1}, v{Q1}, v{T}')
    for r in (Q1+1, Q1+2, Q1+3, Q2): a(f's_nop 2\nv_dot2_f32_bf16 v{T}, v{r}, v{r}, v{T}')
    a(f's_nop 2\nv_mov_b32 v{T+1}, v{T}\ns_nop 1\nv_permlane32_swap_b32 v{T}, v{T+1}\nv_add_f32 v{T}, v{T}, v{T+1}')
    a(f'v_mul_f32 v{T}, s44, v{T}\nv_sqrt_f32 v{T}, v{T}\ns_nop 0\nv_mul_f32 v{T}, {f32bits(-(1+2**-6)):#x}, v{T}')
    a(f'v_mov_b32 v{T+1}, 0\nv_cvt_pk_bf16_f32 v{T}, v{T}, v{T+1}\nv_cndmask_b32 v{Q2+1}, v{T+1}, v{T}, vcc')
    stamp(a, 1, 92)
    a('s_barrier')
    stamp(a, 2, 92)
    def rdK(buf, areg, u):
        a(f'ds_read_b128 v[{Kf[buf]}:{Kf[buf]+3}], v{aK1[areg]} offset:{u*KVT}\nds_read_b64 v[{Kf[buf]+4}:{Kf[buf]+5}], v{aK2[areg]} offset:{u*KVT}')
    def rdV(buf, areg, u):
        a(f'ds_read_b128 v[{Vf[buf]}:{Vf[buf]+3}], v{aV[areg]} offset:{u*KVT}\nds_read_b128 v[{Vf[buf]+4}:{Vf[buf]+7}], v{aV[areg]} offset:{u*KVT+640}')
    def qk1(sb, kb): a(f'v_mfma_f32_32x32x16_bf16 v[{S[sb]}:{S[sb]+15}], v[{Kf[kb]}:{Kf[kb]+3}], v[{Q1}:{Q1+3}], 0')
    def qk2(sb, kb): a(f'v_mfma_f32_32x32x8bf16_1k v[{S[sb]}:{S[sb]+15}], v[{Kf[kb]+4}:{Kf[kb]+5}], v[{Q2}:{Q2+1}], v[{S[sb]}:{S[sb]+15}]')
    def rdK1(buf, areg, u): a(f'ds_read_b128 v[{Kf[buf]}:{Kf[buf]+3}], v{aK1[areg]} offset:{u*KVT}')
    def rdK2(buf, areg, u): a(f'ds_read_b64 v[{Kf[buf]+4}:{Kf[buf]+5}], v{aK2[areg]} offset:{u*KVT}')
    def rdV1(buf, areg, u): a(f'ds_read_b128 v[{Vf[buf]}:{Vf[buf]+3}], v{aV[areg]} offset:{u*KVT}')
    def rdV2(buf, areg, u): a(f'ds_read_b128 v[{Vf[buf]+4}:{Vf[buf]+7}], v{aV[areg]} offset:{u*KVT+640}')
    def pv(h, vb): a(f'v_mfma_f32_32x32x16_bf16 v[{O}:{O+15}], v[{Vf[vb]+4*h}:{Vf[vb]+4*h+3}], v[{P+4*h}:{P+4*h+3}], v[{O}:{O+15}]')
    rdK(0, 0, 0); rdK(1, 0, 1); rdV(0, 0, 0)
    for i in range(4): a(f'v_mov_b32 v{P+4+i}, 0\nv_mov_b32 v{Vf[1]+4+i}, 0')
    a('s_waitcnt lgkmcnt(4)'); qk1(0, 0); qk2(0, 0)
    a(f's_mov_b32 s24, 0\ns_mov_b32 s25, {2*CH}')
    a('s_nop 7\ns_nop 3')
    a('.p2align 6\nK2a_loop:')
    for u in range(8):
        b = u & 1; s = S[b]
        ex = lambda lo, hi: [a(f'{"v_mov_b32" if os.environ.get("NOEXP") else "v_exp_f32"} v{s+i}, v{s+i}') for i in range(lo, hi)]
        cv = lambda lo, hi: [a(f'v_cvt_pk_bf16_f32 v{P+i}, v{s+2*i}, v{s+2*i+1}') for i in range(lo, hi)]
        ka, ku = (0, u+2) if u + 2 < 8 else (1, u+2-8)
        va, vu = (0, u+1) if u + 1 < 8 else (1, 0)
        if u == 6:
            a('s_waitcnt vmcnt(0) lgkmcnt(0)\ns_barrier')
            a(f's_add_u32 s22, s22, {CH}\ns_add_u32 s23, s20, s25')
        else: a('s_waitcnt lgkmcnt(0)')
        qk1(1-b, 1-b)
        rdK1(b, ka, ku)
        if u in (6, 7, 0): dmap({6: 0, 7: 1, 0: 2}[u], 22, 23)
        ex(0, 5)
        pv(1, 1-b)
        rdK2(b, ka, ku)
        ex(5, 8); cv(0, 4)
        qk2(1-b, 1-b)
        rdV1(1-b, va, vu)
        ex(8, 12)
        pv(0, b)
        rdV2(1-b, va, vu)
        ex(12, 16); cv(4, 8)
    for r in (aK1, aK2, aV): a(f'v_mov_b32 v{r[0]}, v{r[1]}')
    for r, k in ((aK1, 0), (aK2, 1), (aV, 2)): a(f'v_add_u32 v{r[1]}, s25, v{T+8+k}')
    a(f's_add_u32 s25, s25, {CH}\ns_cmp_ge_u32 s25, {3*CH}\ns_cselect_b32 s25, 0, s25')
    a('s_add_u32 s24, s24, 1\ns_cmp_lt_u32 s24, 8\ns_cbranch_scc1 K2a_loop')
    a('s_nop 1'); pv(1, 1)
    a('s_waitcnt vmcnt(0) lgkmcnt(0)\ns_nop 7\ns_nop 7')
    stamp(a, 3, 92)
    a(f'v_mov_b32 v{T}, v{O+10}\nv_mov_b32 v{T+1}, v{O+10}\ns_nop 1\nv_permlane32_swap_b32 v{T}, v{T+1}')
    a(f's_mov_b32 s26, {f32bits(2.0**-80)}\nv_cmp_nle_f32 vcc, s26, v{T}\ns_nop 1\ns_nop 3\ns_cbranch_vccnz K2a_slow')
    a('K2a_fin:')
    a(f'v_rcp_f32 v{T}, v{T}\ns_nop 0')
    for i in range(10): a(f'v_mul_f32 v{O+i}, v{O+i}, v{T}')
    for i in range(5): a(f'v_cvt_pk_bf16_f32 v{P+i}, v{O+2*i}, v{O+2*i+1}')
    a(f'buffer_store_dwordx2 v[{P}:{P+1}], v103, s[16:19], s7 offen\nbuffer_store_dwordx2 v[{P+2}:{P+3}], v103, s[16:19], s7 offen offset:16')
    a(f'v_cmp_gt_u32 vcc, 32, v0\ns_nop 1\ns_and_b64 exec, exec, vcc\nbuffer_store_dword v{P+4}, v103, s[16:19], s7 offen offset:32')
    if STAMP:
        a('s_mov_b64 exec, -1\ns_waitcnt vmcnt(0)'); stamp(a, 4, 92); stamp_flush(a, 5, 92)
    a('s_endpgm')
    a('K2a_slow:')
    a(f'v_lshlrev_b32 v{T+4}, 4, v0\nv_lshlrev_b32 v{T+5}, 3, v1\nv_add_u32 v{T+5}, 1024, v{T+5}\nv_mov_b32 v{T+6}, v{T+10}')
    a(f'v_and_b32 v{Q2+1}, 0, v{Q2+1}\nv_mov_b32 v{T+7}, 0xff7fffff\ns_mov_b32 s26, 0')
    a('K2a_s1:')
    a(f'buffer_load_dwordx4 v[{Kf[0]}:{Kf[0]+3}], v{T+4}, s[12:15], s26 offen\nbuffer_load_dwordx2 v[{Kf[0]+4}:{Kf[0]+5}], v{T+5}, s[12:15], s26 offen\ns_waitcnt vmcnt(0)')
    qk1(0, 0); qk2(0, 0); a('s_nop 7\ns_nop 7')
    for i in range(16): a(f'v_max_f32 v{T+7}, v{T+7}, v{S[0]+i}')
    a(f's_add_u32 s26, s26, {KVT}\ns_cmp_lt_u32 s26, {64*KVT}\ns_cbranch_scc1 K2a_s1')
    a(f'v_mov_b32 v{T}, v{T+7}\ns_nop 1\nv_permlane32_swap_b32 v{T}, v{T+7}\nv_max_f32 v{T+7}, v{T+7}, v{T}')
    for i in range(16): a(f'v_mov_b32 v{O+i}, 0')
    a('s_mov_b32 s26, 0\nK2a_s2:')
    a(f'buffer_load_dwordx4 v[{Kf[0]}:{Kf[0]+3}], v{T+4}, s[12:15], s26 offen\nbuffer_load_dwordx2 v[{Kf[0]+4}:{Kf[0]+5}], v{T+5}, s[12:15], s26 offen')
    a(f'buffer_load_dwordx4 v[{Vf[0]}:{Vf[0]+3}], v{T+6}, s[12:15], s26 offen\nbuffer_load_dwordx4 v[{Vf[0]+4}:{Vf[0]+7}], v{T+6}, s[12:15], s26 offen offset:640\ns_waitcnt vmcnt(0)')
    qk1(0, 0); qk2(0, 0); a('s_nop 7\ns_nop 7')
    for i in range(16): a(f'v_sub_f32 v{S[0]+i}, v{S[0]+i}, v{T+7}\nv_exp_f32 v{S[0]+i}, v{S[0]+i}')
    a('s_nop 0')
    for i in range(8): a(f'v_cvt_pk_bf16_f32 v{P+i}, v{S[0]+2*i}, v{S[0]+2*i+1}')
    a('s_nop 1')
    a(f'v_mfma_f32_32x32x16_bf16 v[{O}:{O+15}], v[{Vf[0]}:{Vf[0]+3}], v[{P}:{P+3}], v[{O}:{O+15}]')
    a(f'v_mfma_f32_32x32x16_bf16 v[{O}:{O+15}], v[{Vf[0]+4}:{Vf[0]+7}], v[{P+4}:{P+7}], v[{O}:{O+15}]')
    a(f's_add_u32 s26, s26, {KVT}\ns_cmp_lt_u32 s26, {64*KVT}\ns_cbranch_scc1 K2a_s2')
    a('s_nop 7\ns_nop 7')
    a(f'v_mov_b32 v{T}, v{O+10}\nv_mov_b32 v{T+1}, v{O+10}\ns_nop 1\nv_permlane32_swap_b32 v{T}, v{T+1}\ns_branch K2a_fin')

def k2(a):
    a('s_cmp_ge_u32 s2, 256\ns_cbranch_scc1 K2_end')
    a('s_load_dwordx2 s[40:41], s[0:1], 80')
    a(f'v_lshrrev_b32 v1, 6, v0\ns_nop 0\nv_readfirstlane_b32 s{sWv}, v1\nv_and_b32 v0, 63, v0\ns_nop 2')
    if STAMP: a('v_lshl_add_u32 v123, v1, 6, v0')
    stamp(a, 0, 92)
    a(f's_cmp_ge_u32 s{sWv}, 8\ns_cbranch_scc1 K2_fft')
    b = Asm(); attn_wave(b)
    txt = b.text().replace("    v_mov_b32 v48, 0\n", "    v_mov_b32 v112, v96\n    v_mov_b32 v113, v97\n    v_mov_b32 v114, v98\n    v_mov_b32 v48, 0\n", 1)
    a.l.append(txt.rstrip('\n'))
    a('K2_fft:')
    fft_wave(a)
    a('K2_end:\ns_endpgm')
```

```python
from gemm import *
def k3(a):
    a('s_cmp_ge_u32 s2, 192\ns_cbranch_scc1 K3_end')
    a('s_load_dwordx2 s[36:37], s[0:1], 56\ns_load_dwordx2 s[38:39], s[0:1], 64\ns_load_dwordx2 s[40:41], s[0:1], 80')
    lane_ids(a)
    a('s_cmp_ge_u32 s2, 96\ns_cbranch_scc1 K3_ai')
    a(f's_lshr_b32 s{sT0}, s2, 3\ns_and_b32 s{sT1}, s2, 7\ns_lshl_b32 s{sT1}, s{sT1}, 1\ns_cmp_ge_u32 s{sT0}, 6\ns_cselect_b32 s{sT2}, 1, 0\ns_add_u32 s{sT1}, s{sT1}, s{sT2}\ns_lshl_b32 s{sRow0}, s{sT1}, 7\ns_mul_i32 s{sT2}, s{sT2}, 6\ns_sub_u32 s{sT0}, s{sT0}, s{sT2}\ns_mul_i32 s{sCol0}, s{sT0}, 96')
    a('s_waitcnt lgkmcnt(0)')
    srd(a, sS, 40, NB_ACT, WS_O); srd(a, sW, 36, 576*1152); srd(a, sO, 38, 2048*2304)
    a(f's_mul_i32 s33, s{sRow0}, 2304\ns_lshl_b32 s34, s{sCol0}, 1\ns_add_u32 s33, s33, s34\ns_add_u32 s33, s33, 1152')
    def su(part): setup_R(a, 'S', 1152, sRow0, part); setup_T(a, 'W', 1152, sCol0, part)
    gemm_task(a, 'K3o', 'R', 'T', 128, 64*1152, su, 'row', 33, 2304)
    a('K3_ai:')
    a('s_sub_u32 s3, s2, 96')
    a(f's_lshr_b32 s{sT0}, s3, 3\ns_and_b32 s{sT1}, s3, 7\ns_lshl_b32 s{sT1}, s{sT1}, 1\ns_cmp_ge_u32 s{sT0}, 6\ns_cselect_b32 s{sT2}, 1, 0\ns_add_u32 s{sT1}, s{sT1}, s{sT2}\ns_lshl_b32 s{sRow0}, s{sT1}, 7\ns_mul_i32 s{sT2}, s{sT2}, 6\ns_sub_u32 s{sT0}, s{sT0}, s{sT2}\ns_mul_i32 s{sCol0}, s{sT0}, 96')
    pc_addr(a, 52, 'TTAB', 'K3_pc1')
    a('s_waitcnt lgkmcnt(0)')
    srd(a, sS, 40, 576*4096, WS_ZC); srd(a, sW, 52, 576*1152); srd(a, sO, 38, 2048*2304)
    a(f's_mul_i32 s33, s{sRow0}, 2304\ns_lshl_b32 s34, s{sCol0}, 1\ns_add_u32 s33, s33, s34')
    def su(part): setup_T(a, 'S', 4096, sRow0, part); setup_T(a, 'W', 1152, sCol0, part)
    gemm_task(a, 'K3a', 'T', 'T', 64*4096, 64*1152, su, 'row', 33, 2304)
    a('K3_end:\ns_endpgm')
```

```python
import math, struct
from asmlib import *
S_, D_, H_, DH = 2048, 576, 32, 18
WS_Q   = 0
WS_KV  = 0x0240000
WS_KMX = 0x0270000
WS_XC  = 0x0280000
WS_WT  = 0x04C0000
WS_ZC  = 0x0980000
WS_O   = 0x0BC0000
NB_ACT = S_*D_*2
KVT = 2560
QSCALE = math.log2(math.e) / math.sqrt(18.0)
def f32bits(x): return struct.unpack('<I', struct.pack('<f', x))[0]
def bf16(x):
    u = f32bits(x)
    return ((u + 0x7fff + ((u >> 16) & 1)) >> 16) & 0xffff
def srd(a, s, base, nbytes, off=0):
    if off:
        a(f's_add_u32 s{s}, s{base}, {off}\ns_addc_u32 s{s+1}, s{base+1}, 0')
    else:
        a(f's_mov_b32 s{s}, s{base}\ns_mov_b32 s{s+1}, s{base+1}')
    a(f's_mov_b32 s{s+2}, {nbytes}\ns_mov_b32 s{s+3}, 0x00020000')
def pc_addr(a, s, label, uniq):
    a(f's_getpc_b64 s[{s}:{s+1}]\n{uniq}:\ns_add_u32 s{s}, s{s}, {label}-{uniq}\ns_addc_u32 s{s+1}, s{s+1}, 0')
def ttab_text():
    s = ['.altmacro']
    for i in range(576): s.append(f'.set tc{i},{bf16(math.cos(2*math.pi*i/576))}')
    s.append('''.macro tab_e i
.short tc\\i
.endm
.macro tab_row p, o
.set tn,0
.rept 576
tab_e %((tn*p+o)%576)
.set tn,tn+1
.endr
.endm
.p2align 8
.type TTAB,@object
TTAB:
tab_row 0, 0
tab_row 288, 0
.set tp,1
.rept 287
tab_row %tp, 0
tab_row %tp, 144
.set tp,tp+1
.endr
.noaltmacro''')
    return '\n'.join(s) + '\n'
def data_text(label, arr16B):
    assert len(arr16B) % 8 == 0
    q = struct.unpack('<%dQ' % (len(arr16B)//8), arr16B)
    out = ['.p2align 8', f'.type {label},@object', f'{label}:']
    for i in range(0, len(q), 16):
        out.append('.quad ' + ','.join(hex(x) for x in q[i:i+16]))
    return '\n'.join(out) + '\n'
import os
STAMP = os.environ.get('STAMP')
WS_ST = 0x1800000
_stn = [0]
ST5 = [False]
def stamp(a, idx, sbase=90):
    if not STAMP: return
    if STAMP == '5' and not ST5[0]: return
    if STAMP == '4':
        if idx == 2:
            a(f's_memtime s[{sbase}:{sbase+1}]\ns_waitcnt lgkmcnt(0)\ns_mov_b32 s{sbase+2+1}, s{sbase}')
        if idx == 3:
            a(f's_memtime s[{sbase}:{sbase+1}]\ns_waitcnt lgkmcnt(0)\ns_mov_b32 s{sbase+2+4}, s{sbase}')
        if idx in (1, 4): return
    a(f'{"s_memtime" if STAMP == "2" else "s_memrealtime"} s[{sbase}:{sbase+1}]\ns_waitcnt lgkmcnt(0)\ns_mov_b32 s{sbase+2+idx}, s{sbase}')
def stamp_flush(a, n, sbase=90, vt=120):
    if not STAMP: return
    if STAMP == '5':
        if not ST5[0]: return
        n = 8
    _stn[0] += 1
    a(f's_load_dwordx2 s[{sbase}:{sbase+1}], s[0:1], 80\ns_waitcnt lgkmcnt(0)\ns_add_u32 s{sbase}, s{sbase}, {WS_ST}\ns_addc_u32 s{sbase+1}, s{sbase+1}, 0')
    a(f'v_lshrrev_b32 v{vt}, 6, v{vt+3}\nv_lshlrev_b32 v{vt}, 6, v{vt}\ns_lshl_b32 s{sbase+2+n}, s2, 10\nv_add_u32 v{vt}, s{sbase+2+n}, v{vt}')
    for i in range(n):
        a(f'v_mov_b32 v{vt+1}, s{sbase+2+i}\nglobal_store_dword v{vt}, v{vt+1}, s[{sbase}:{sbase+1}] offset:{4*i}')
    a('s_waitcnt vmcnt(0)')

WTB = os.environ.get('WTB', '1') == '1'
```

```python
from common import *
PF = os.environ.get('NOPF') is None
BUF = 28672
NBUF = 5
WOFF = 16384
vS   = 2
vW   = 6
vRS  = 12
vRW  = 16
vTS  = 20
vTW  = 24
vF   = 32
vA   = 64
vT   = 112
NV   = 128
sS, sW, sO = 8, 12, 16
sC, sBuf, sFill, sKS, sKW = 20, 21, 22, 23, 24
sSn, sWn = 25, 26
sT0, sT1, sT2 = 27, 28, 29
sWv = 30
sRow0, sCol0 = 31, 32
sW8 = 35

def lane_ids(a):
    if STAMP: a('v_mov_b32 v123, v0')
    stamp(a, 0)
    a(f'v_lshrrev_b32 v1, 6, v0\ns_nop 0\nv_readfirstlane_b32 s{sW8}, v1\nv_and_b32 v0, 63, v0\ns_and_b32 s{sWv}, s{sW8}, 3')

def setup_R(a, which, stride, row0_s, part):
    t = vT
    if part == 'dma': a(f'v_lshrrev_b32 v{t}, 3, v0\nv_and_b32 v{t+1}, 7, v0')
    if part != 'dma': pass
    elif which == 'S':
        for q in range(4):
            a(f'v_add_u32 v{t+2}, {8*q}, v{t}\nv_lshrrev_b32 v{t+3}, 1, v{t+2}\nv_and_b32 v{t+3}, 7, v{t+3}\nv_xor_b32 v{t+3}, v{t+3}, v{t+1}')
            a(f's_lshl_b32 s{sT0}, s{sWv}, 5\ns_add_u32 s{sT0}, s{sT0}, s{row0_s}')
            a(f'v_add_u32 v{t+2}, s{sT0}, v{t+2}\ns_movk_i32 s{sT1}, {stride}\nv_mul_lo_u32 v{t+2}, v{t+2}, s{sT1}')
            a(f'v_lshl_add_u32 v{vS+q}, v{t+3}, 4, v{t+2}')
    else:
        a(f's_lshl_b32 s{sT0}, s{sWv}, 3\nv_add_u32 v{t+2}, s{sT0}, v{t}')
        a(f'v_lshrrev_b32 v{t+3}, 1, v{t+2}\nv_and_b32 v{t+3}, 7, v{t+3}\nv_xor_b32 v{t+3}, v{t+3}, v{t+1}')
        a(f'v_add_u32 v{t+2}, s{row0_s}, v{t+2}\ns_movk_i32 s{sT1}, {stride}\nv_mul_lo_u32 v{t+2}, v{t+2}, s{sT1}')
        a(f'v_lshl_add_u32 v{vW}, v{t+3}, 4, v{t+2}')
        for tt in (1, 2): a(f'v_add_u32 v{vW+tt}, {32*stride*tt}, v{vW}')
    if part == 'dma': return
    dst = vRS if which == 'S' else vRW
    a(f'v_and_b32 v{t}, 31, v0\nv_lshrrev_b32 v{t+1}, 5, v0')
    a(f'v_lshrrev_b32 v{t+2}, 1, v{t}\nv_and_b32 v{t+2}, 7, v{t+2}\nv_xor_b32 v{t+2}, v{t+2}, v{t+1}')
    a(f'v_lshlrev_b32 v{t+3}, 7, v{t}')
    if which == 'S':
        a(f's_lshl_b32 s{sT0}, s{sWv}, 12\nv_add_u32 v{t+3}, s{sT0}, v{t+3}')
    else:
        a(f'v_add_u32 v{t+3}, {WOFF}, v{t+3}')
    for j in range(4):
        a(f'v_xor_b32 v{t+4}, {2*j}, v{t+2}\nv_lshl_add_u32 v{dst+j}, v{t+4}, 4, v{t+3}')

def setup_T(a, which, stride, col0_s, part):
    t = vT
    if part == 'dma':
        a(f'v_lshrrev_b32 v{t}, 2, v0\nv_and_b32 v{t+1}, 3, v0\nv_lshlrev_b32 v{t+1}, 4, v{t+1}')
        a(f's_mov_b32 s{sT1}, {stride}')
    if part != 'dma': pass
    elif which == 'S':
        a(f's_lshl_b32 s{sT0}, s{sWv}, 5\ns_add_u32 s{sT0}, s{sT0}, s{col0_s}\ns_lshl_b32 s{sT0}, s{sT0}, 1')
        a(f'v_mul_lo_u32 v{t+2}, v{t}, s{sT1}\nv_add_u32 v{t+2}, v{t+2}, v{t+1}\nv_add_u32 v{vS}, s{sT0}, v{t+2}')
        for j in (1, 2, 3): a(f'v_add_u32 v{vS+j}, {16*stride*j}, v{vS}')
    else:
        a(f's_lshl_b32 s{sT0}, s{sWv}, 4\nv_add_u32 v{t}, s{sT0}, v{t}\nv_mul_lo_u32 v{t+2}, v{t}, s{sT1}\nv_add_u32 v{t+2}, v{t+2}, v{t+1}')
        a(f's_lshl_b32 s{sT0}, s{col0_s}, 1\nv_add_u32 v{vW}, s{sT0}, v{t+2}')
        for tt in (1, 2): a(f'v_add_u32 v{vW+tt}, {64*tt}, v{vW}')
    if part == 'dma': return
    dst = vRS if which == 'S' else vRW
    a(f'v_lshrrev_b32 v{t}, 5, v0\nv_lshlrev_b32 v{t}, 3, v{t}\nv_bfe_u32 v{t+1}, v0, 2, 2\nv_add_u32 v{t}, v{t}, v{t+1}\nv_lshlrev_b32 v{t}, 6, v{t}')
    a(f'v_bfe_u32 v{t+1}, v0, 4, 1\nv_lshl_add_u32 v{t}, v{t+1}, 5, v{t}\nv_and_b32 v{t+1}, 3, v0\nv_lshl_add_u32 v{t}, v{t+1}, 3, v{t}')
    if which == 'S':
        a(f's_lshl_b32 s{sT0}, s{sWv}, 12\nv_add_u32 v{dst}, s{sT0}, v{t}')
    else:
        a(f'v_add_u32 v{dst}, {WOFF}, v{t}')

def dma_chunk(a, kS, kW, kv=False):
    a(f's_lshl_b32 s{sT0}, s{sWv}, 12\ns_add_u32 s{sT0}, s{sT0}, s{sFill}')
    for q in range(4):
        a(f's_add_u32 m0, s{sT0}, {1024*q}\ns_nop 0\nbuffer_load_dwordx4 v{vS+q}, s[{sS}:{sS+3}], s{sKS} offen lds')
    if not kv:
        a(f's_lshl_b32 s{sT0}, s{sWv}, 10\ns_add_u32 s{sT0}, s{sT0}, s{sFill}')
        for tt in range(3):
            a(f's_add_u32 m0, s{sT0}, {WOFF + 4096*tt}\ns_nop 0\nbuffer_load_dwordx4 v{vW+tt}, s[{sW}:{sW+3}], s{sKW} offen lds')
    else:
        a(f's_mul_i32 s{sT0}, s{sWv}, 1280\ns_add_u32 s{sT0}, s{sT0}, s{sFill}')
        for i in range(5):
            a(f's_add_u32 m0, s{sT0}, {WOFF + 256*i}\ns_nop 0\nbuffer_load_dword v{vW+i}, s[{sW}:{sW+3}], s{sKW} offen lds')

def reads(a, kS, kW, j, st, kv=False):
    f = vF + 16*st
    n = 0
    if kS == 'R': a(f'ds_read_b128 v[{f}:{f+3}], v{vTS+j}'); n += 1
    else:
        for rd in range(2): a(f'ds_read_b64_tr_b16 v[{f+2*rd}:{f+2*rd+1}], v{vTS} offset:{1024*j+256*rd}'); n += 1
    if kv:
        for tt in range(2):
            for rd in range(2):
                a(f'ds_read_b64_tr_b16 v[{f+4+4*tt+2*rd}:{f+4+4*tt+2*rd+1}], v{vTW} offset:{40*(16*j+4*rd)+2560*tt}'); n += 1
    else:
        for tt in range(3):
            g = f + 4 + 4*tt
            if kW == 'R': a(f'ds_read_b128 v[{g}:{g+3}], v{vTW+j} offset:{4096*tt}'); n += 1
            else:
                for rd in range(2): a(f'ds_read_b64_tr_b16 v[{g+2*rd}:{g+2*rd+1}], v{vTW} offset:{4096*tt+1024*j+256*rd}'); n += 1
    return n

def set_addrs(a, kS, kW, sreg):
    for j in range(4 if kS == 'R' else 1): a(f'v_add_u32 v{vTS+j}, s{sreg}, v{vRS+j}')
    for j in range(4 if kW == 'R' else 1): a(f'v_add_u32 v{vTW+j}, s{sreg}, v{vRW+j}')

def loader(a, name, kS, kW, dKS, dKW, kv=False):
    nd = 9 if kv else 7
    a(f's_mov_b32 s{sSn}, s{sS+2}\ns_mov_b32 s{sWn}, s{sW+2}')
    a(f's_mov_b32 s{sFill}, 0\ns_mov_b32 s{sKS}, 0\ns_mov_b32 s{sKW}, 0\ns_mov_b32 s{sC}, 0')
    a(f'{name}_pro:')
    dma_chunk(a, kS, kW, kv)
    a(f's_add_u32 s{sFill}, s{sFill}, {BUF}\ns_add_u32 s{sKS}, s{sKS}, {dKS}\ns_add_u32 s{sKW}, s{sKW}, {dKW}')
    a(f's_add_u32 s{sC}, s{sC}, 1\ns_cmp_lt_u32 s{sC}, 4\ns_cbranch_scc1 {name}_pro')
    a(f's_mov_b32 s{sC}, 0')
    a(f's_waitcnt vmcnt({3*nd})\ns_barrier')
    a(f'{name}_lloop:')
    a(f's_waitcnt vmcnt({2*nd})\ns_barrier')
    a(f's_cmp_lt_u32 s{sC}, 5\ns_cselect_b32 s{sS+2}, s{sSn}, 0\ns_cselect_b32 s{sW+2}, s{sWn}, 0')
    dma_chunk(a, kS, kW, kv)
    a(f's_add_u32 s{sFill}, s{sFill}, {BUF}\ns_cmp_ge_u32 s{sFill}, {BUF*NBUF}\ns_cselect_b32 s{sFill}, 0, s{sFill}')
    a(f's_add_u32 s{sKS}, s{sKS}, {dKS}\ns_add_u32 s{sKW}, s{sKW}, {dKW}')
    a(f's_add_u32 s{sC}, s{sC}, 1\ns_cmp_lt_u32 s{sC}, 9\ns_cbranch_scc1 {name}_lloop')
    a('s_waitcnt vmcnt(0)')

def compute(a, name, kS, kW, kv=False):
    nt = 2 if kv else 3
    for i in range(16*nt): a(f'v_mov_b32 v{vA+i}, 0')
    a(f's_mov_b32 s{sBuf}, 0\ns_mov_b32 s{sC}, 0')
    set_addrs(a, kS, 'T' if kv else kW, sBuf)
    stamp(a, 1)
    a('s_barrier')
    stamp(a, 2)
    reads(a, kS, kW, 0, 0, kv)
    a(f'{name}_loop:')
    a('s_barrier')
    for j in range(4):
        st = j & 1
        if j < 3:
            n = reads(a, kS, kW, j+1, 1-st, kv)
        else:
            a(f's_add_u32 s{sBuf}, s{sBuf}, {BUF}\ns_cmp_ge_u32 s{sBuf}, {BUF*NBUF}\ns_cselect_b32 s{sBuf}, 0, s{sBuf}')
            set_addrs(a, kS, 'T' if kv else kW, sBuf)
            n = reads(a, kS, kW, 0, 1-st, kv)
        a(f's_waitcnt lgkmcnt({n})')
        f = vF + 16*st
        if kv:
            a(f'v_mfma_f32_32x32x16_bf16 v[{vA}:{vA+15}], v[{f+4}:{f+7}], v[{f}:{f+3}], v[{vA}:{vA+15}]')
            a(f'v_mfma_f32_32x32x16_bf16 v[{vA+16}:{vA+31}], v[{f}:{f+3}], v[{f+8}:{f+11}], v[{vA+16}:{vA+31}]')
        else:
            for tt in range(3):
                g = f + 4 + 4*tt; d = vA + 16*tt
                a(f'v_mfma_f32_32x32x16_bf16 v[{d}:{d+15}], v[{g}:{g+3}], v[{f}:{f+3}], v[{d}:{d+15}]')
    a(f's_add_u32 s{sC}, s{sC}, 1\ns_cmp_lt_u32 s{sC}, 9\ns_cbranch_scc1 {name}_loop')
    a('s_waitcnt lgkmcnt(0)\ns_nop 7\ns_nop 7')
    stamp(a, 3)

def epi_write(a, mode, scale=None):
    t = vT
    if mode == 'row':
        a(f'v_and_b32 v{t}, 31, v0\ns_lshl_b32 s{sT0}, s{sWv}, 5\nv_add_u32 v{t}, s{sT0}, v{t}\nv_mul_u32_u24 v{t}, 208, v{t}\nv_lshrrev_b32 v{t+1}, 5, v0\nv_lshl_add_u32 v{t}, v{t+1}, 3, v{t}')
        if scale is not None: a(f's_mov_b32 s{sT2}, {f32bits(scale)}')
        for tt in range(3):
            for g in range(4):
                d = vA + 16*tt + 4*g; p = t + 2 + 2*((tt*4+g) & 3)
                if scale is not None:
                    for r in range(4): a(f'v_mul_f32 v{d+r}, s{sT2}, v{d+r}')
                a(f'v_cvt_pk_bf16_f32 v{p}, v{d}, v{d+1}\nv_cvt_pk_bf16_f32 v{p+1}, v{d+2}, v{d+3}')
                if tt == 0 and g == 0: a('s_barrier')
                a(f'ds_write_b64 v{t}, v[{p}:{p+1}] offset:{64*tt+16*g}')
    else:
        a(f'v_and_b32 v{t}, 31, v0\ns_lshl_b32 s{sT0}, s{sWv}, 5\nv_add_u32 v{t}, s{sT0}, v{t}\nv_lshlrev_b32 v{t}, 2, v{t}\nv_lshrrev_b32 v{t+1}, 5, v0\nv_mul_u32_u24 v{t+1}, 1152, v{t+1}\nv_add_u32 v{t}, v{t}, v{t+1}')
        for tt in range(3):
            for g in range(4):
                d = vA + 16*tt + 4*g
                for u in range(2):
                    p = t + 2 + ((tt*8+g*2+u) & 7)
                    a(f'v_cvt_pk_bf16_f32 v{p}, v{d+2*u}, v{d+2*u+1}')
                    if tt == 0 and g == 0 and u == 0: a('s_barrier')
                    a(f'ds_write_b32 v{t}, v{p} offset:{(16*tt+4*g+u)*576}')
    a('s_waitcnt lgkmcnt(0)\ns_barrier')

def epi_store(a, mode, soff_s, rowstride):
    t = vT
    a(f's_lshl_b32 s{sT0}, s{sW8}, 6\nv_add_u32 v{t}, s{sT0}, v0')
    for n in range(3):
        r, c, la, ga = t+1, t+2, t+4+n, t+8+n
        a(f'v_add_u32 v{t+3}, {512*n}, v{t}')
        if mode == 'row':
            a(f'v_mul_u32_u24 v{r}, 5462, v{t+3}\nv_lshrrev_b32 v{r}, 16, v{r}\nv_mul_u32_u24 v{c}, 12, v{r}\nv_sub_u32 v{c}, v{t+3}, v{c}')
            ls = 208
        else:
            a(f'v_lshrrev_b32 v{r}, 5, v{t+3}\nv_and_b32 v{c}, 31, v{t+3}')
            ls = 576
        a(f'v_lshlrev_b32 v{c}, 4, v{c}\nv_mad_u32_u24 v{la}, v{r}, s{sT2}, v{c}'.replace(f's{sT2}', f'v{t+11}') if False else
          f'v_lshlrev_b32 v{c}, 4, v{c}\nv_mul_u32_u24 v{la}, {ls}, v{r}\nv_add_u32 v{la}, v{la}, v{c}\nv_mul_u32_u24 v{ga}, {rowstride}, v{r}\nv_add_u32 v{ga}, v{ga}, v{c}')
    return t

def epi_store2(a, soff_s):
    t = vT
    for n in range(3): a(f'ds_read_b128 v[{vF+4*n}:{vF+4*n+3}], v{t+4+n}')
    for n in range(3):
        a(f's_waitcnt lgkmcnt({2-n})\nbuffer_store_dwordx4 v[{vF+4*n}:{vF+4*n+3}], v{t+8+n}, s[{sO}:{sO+3}], s{soff_s} offen')

def prefetch(a, name, kS, kW, strideS):
    t = vT; d = vT + 12
    a(f's_mul_i32 s{sT0}, s{sCol0}, 683\ns_lshr_b32 s{sT0}, s{sT0}, 16\ns_lshr_b32 s{sT1}, s{sRow0}, 7\ns_and_b32 s{sT1}, s{sT1}, 1')
    a(f's_cmp_ge_u32 s{sWv}, 2\ns_cbranch_scc1 {name}_pf1')
    a(f's_lshl_b32 s{sT2}, s{sWv}, 6\nv_add_u32 v{t}, s{sT2}, v0')
    if kS == 'R':
        a(f'v_mul_u32_u24 v{t+1}, 13108, v{t}\nv_lshrrev_b32 v{t+1}, 16, v{t+1}\nv_mul_u32_u24 v{t+2}, 5, v{t+1}\nv_sub_u32 v{t+2}, v{t}, v{t+2}')
        a(f's_mul_i32 s{sT2}, s{sT0}, 22\ns_add_u32 s{sT2}, s{sT2}, s{sRow0}\nv_add_u32 v{t+1}, s{sT2}, v{t+1}\nv_mul_u32_u24 v{t+1}, {strideS}, v{t+1}\nv_lshl_add_u32 v{t+1}, v{t+2}, 7, v{t+1}')
        a(f'buffer_load_dword v{d}, v{t+1}, s[{sS}:{sS+3}], 0 offen offset:512')
    else:
        a(f's_mul_i32 s{sT2}, s{sT0}, 107\nv_add_u32 v{t}, s{sT2}, v{t}\nv_lshrrev_b32 v{t+1}, 1, v{t}\nv_add_u32 v{t+1}, 256, v{t+1}\nv_lshlrev_b32 v{t+1}, 12, v{t+1}\nv_and_b32 v{t+2}, 1, v{t}\nv_lshl_add_u32 v{t+1}, v{t+2}, 7, v{t+1}')
        a(f's_lshl_b32 s{sT2}, s{sRow0}, 1\nbuffer_load_dword v{d}, v{t+1}, s[{sS}:{sS+3}], s{sT2} offen')
    a(f'{name}_pf1:')
    def wline(mexpr_s, dst):
        a(f's_lshl_b32 s{sT2}, s{mexpr_s}, 6\nv_add_u32 v{t}, s{sT2}, v0')
        if kW == 'T':
            a(f's_mul_i32 s{sT2}, s{sT1}, 320\nv_add_u32 v{t}, s{sT2}, v{t}\nv_lshrrev_b32 v{t+1}, 1, v{t}\nv_add_u32 v{t+1}, 256, v{t+1}\nv_mul_u32_u24 v{t+1}, 1152, v{t+1}\nv_and_b32 v{t+2}, 1, v{t}\nv_lshl_add_u32 v{t+1}, v{t+2}, 7, v{t+1}')
            a(f's_lshl_b32 s{sT2}, s{sCol0}, 1\nbuffer_load_dword v{dst}, v{t+1}, s[{sW}:{sW+3}], s{sT2} offen')
        else:
            a(f's_mul_i32 s{sT2}, s{sT1}, 240\nv_add_u32 v{t}, s{sT2}, v{t}\nv_mul_u32_u24 v{t+1}, 13108, v{t}\nv_lshrrev_b32 v{t+1}, 16, v{t+1}\nv_mul_u32_u24 v{t+2}, 5, v{t+1}\nv_sub_u32 v{t+2}, v{t}, v{t+2}')
            a(f'v_add_u32 v{t+1}, s{sCol0}, v{t+1}\nv_mul_u32_u24 v{t+1}, 1152, v{t+1}\nv_lshl_add_u32 v{t+1}, v{t+2}, 7, v{t+1}\nbuffer_load_dword v{dst}, v{t+1}, s[{sW}:{sW+3}], 0 offen offset:512')
    wline(sWv, d+1)
    if kW == 'T':
        a(f's_cmp_lg_u32 s{sWv}, 2\ns_cbranch_scc1 {name}_pf2\ns_mov_b32 s33pf, 4'.replace('s33pf', f's{sC}'))
        wline(sC, d+2)
        a(f'{name}_pf2:')

def gemm_task(a, name, kS, kW, dKS, dKW, setup, mode, soff_s, rowstride, scale=None):
    a(f's_cmp_ge_u32 s{sW8}, 4\ns_cbranch_scc1 {name}_ld')
    pf = PF and name[:2] not in os.environ.get('NOPFK', '')
    if pf: prefetch(a, name, kS, kW, 1152)
    setup('rd')
    compute(a, name, kS, kW)
    if pf: a('s_waitcnt vmcnt(0)')
    epi_write(a, mode, scale)
    a(f's_branch {name}_st')
    a(f'{name}_ld:')
    setup('dma')
    loader(a, name, kS, kW, dKS, dKW)
    epi_store(a, mode, soff_s, rowstride)
    a('s_barrier\ns_barrier')
    a(f's_branch {name}_st2')
    a(f'{name}_st:')
    epi_store(a, mode, soff_s, rowstride)
    a(f'{name}_st2:')
    epi_store2(a, soff_s)
    if STAMP:
        a('s_waitcnt vmcnt(0)'); stamp(a, 4); stamp_flush(a, 5)
    a('s_endpgm')

def epi_rowmajor(a, col_byte0_s, scale=None, rowstride=1152):
    t = vT
    a(f'v_and_b32 v{t}, 31, v0\ns_lshl_b32 s{sT0}, s{sWv}, 5\ns_add_u32 s{sT0}, s{sT0}, s{sRow0}\nv_add_u32 v{t}, s{sT0}, v{t}')
    a(f's_movk_i32 s{sT1}, {rowstride}\nv_mul_lo_u32 v{t}, v{t}, s{sT1}\nv_lshrrev_b32 v{t+1}, 5, v0\nv_lshl_add_u32 v{t}, v{t+1}, 3, v{t}')
    if scale is not None: a(f's_mov_b32 s{sT2}, {f32bits(scale)}')
    for tt in range(3):
        for g in range(4):
            d = vA + 16*tt + 4*g; p = t + 2 + 2*((tt*4+g) & 3)
            if scale is not None:
                for r in range(4): a(f'v_mul_f32 v{d+r}, s{sT2}, v{d+r}')
            a(f'v_cvt_pk_bf16_f32 v{p}, v{d}, v{d+1}\nv_cvt_pk_bf16_f32 v{p+1}, v{d+2}, v{d+3}')
            a(f'buffer_store_dwordx2 v[{p}:{p+1}], v{t}, s[{sO}:{sO+3}], s{col_byte0_s} offen offset:{64*tt+16*g}')
```

```python
from gemm import *
import os
def k1(a):
    only = os.environ.get('K1ONLY')
    a('s_cmp_ge_u32 s2, 256\ns_cbranch_scc1 K1_end')
    a('s_load_dwordx4 s[36:39], s[0:1], 0\ns_load_dwordx4 s[40:43], s[0:1], 16\ns_load_dwordx4 s[44:47], s[0:1], 32\ns_load_dwordx2 s[48:49], s[0:1], 48\ns_load_dwordx2 s[50:51], s[0:1], 80')
    lane_ids(a)
    if only:
        lo, hi = {'q': (0,96), 'a': (96,192), 'kv': (192,208), 'wt': (208,256)}[only]
        a(f's_cmp_lt_u32 s2, {lo}\ns_cbranch_scc1 K1_end\ns_cmp_ge_u32 s2, {hi}\ns_cbranch_scc1 K1_end')
    a('s_cmp_ge_u32 s2, 208\ns_cbranch_scc1 K1_wt')
    a('s_cmp_ge_u32 s2, 192\ns_cbranch_scc1 K1_kv')
    a('s_cmp_ge_u32 s2, 96\ns_cbranch_scc1 K1_af')
    a(f's_lshr_b32 s{sT0}, s2, 3\ns_and_b32 s{sT1}, s2, 7\ns_lshl_b32 s{sT1}, s{sT1}, 1\ns_cmp_ge_u32 s{sT0}, 6\ns_cselect_b32 s{sT2}, 1, 0\ns_add_u32 s{sT1}, s{sT1}, s{sT2}\ns_lshl_b32 s{sRow0}, s{sT1}, 7\ns_mul_i32 s{sT2}, s{sT2}, 6\ns_sub_u32 s{sT0}, s{sT0}, s{sT2}\ns_mul_i32 s{sCol0}, s{sT0}, 96')
    a('s_waitcnt lgkmcnt(0)')
    srd(a, sS, 42, NB_ACT); srd(a, sW, 44, 576*576*2); srd(a, sO, 50, NB_ACT, WS_Q)
    a(f's_mul_i32 s33, s{sRow0}, 1152\ns_lshl_b32 s34, s{sCol0}, 1\ns_add_u32 s33, s33, s34')
    def su(part): setup_R(a, 'S', 1152, sRow0, part); setup_T(a, 'W', 1152, sCol0, part)
    gemm_task(a, 'K1q', 'R', 'T', 128, 64*1152, su, 'row', 33, 1152, scale=QSCALE)
    a('K1_af:')
    a('s_sub_u32 s3, s2, 96')
    a(f's_lshr_b32 s{sT0}, s3, 3\ns_and_b32 s{sT1}, s3, 7\ns_lshl_b32 s{sT1}, s{sT1}, 1\ns_cmp_ge_u32 s{sT0}, 6\ns_cselect_b32 s{sT2}, 1, 0\ns_add_u32 s{sT1}, s{sT1}, s{sT2}\ns_lshl_b32 s{sRow0}, s{sT1}, 7\ns_mul_i32 s{sT2}, s{sT2}, 6\ns_sub_u32 s{sT0}, s{sT0}, s{sT2}\ns_mul_i32 s{sCol0}, s{sT0}, 96')
    pc_addr(a, 52, 'TTAB', 'K1_pc1')
    a('s_waitcnt lgkmcnt(0)')
    srd(a, sS, 36, NB_ACT); srd(a, sW, 52, 576*1152); srd(a, sO, 50, 288*8192, WS_XC)
    a(f's_lshl_b32 s33, s{sCol0}, 12\ns_lshl_b32 s34, s{sRow0}, 2\ns_add_u32 s33, s33, s34')
    def su(part): setup_R(a, 'S', 1152, sRow0, part); setup_R(a, 'W', 1152, sCol0, part)
    gemm_task(a, 'K1a', 'R', 'R', 128, 128, su, 'xc', 33, 8192)
    a('K1_kv:')
    a(f's_sub_u32 s3, s2, 192\ns_lshr_b32 s{sT0}, s3, 3\ns_and_b32 s3, s3, 7\ns_lshl_b32 s3, s3, 1\ns_add_u32 s3, s3, s{sT0}\ns_lshl_b32 s{sRow0}, s3, 7')
    a('s_waitcnt lgkmcnt(0)')
    srd(a, sS, 42, NB_ACT)
    a(f's_cmp_lt_u32 s{sWv}, 2\ns_cselect_b32 s52, s46, s48\ns_cselect_b32 s53, s47, s49')
    srd(a, sW, 52, 576*36); srd(a, sO, 50, 64*KVT + 0x40000, WS_KV)
    t = vT
    a(f's_cmp_lt_u32 s{sW8}, 4\ns_cbranch_scc1 K1kv_cp')
    setup_R(a, 'S', 1152, sRow0, 'dma')
    a(f's_and_b32 s{sT0}, s{sWv}, 1\ns_mul_i32 s{sT0}, s{sT0}, 320')
    a(f's_movk_i32 s{sT1}, 6554')
    for i in range(5):
        a(f'v_add_u32 v{t}, s{sT0}, v0\nv_add_u32 v{t}, {64*i}, v{t}\nv_mul_lo_u32 v{t+1}, v{t}, s{sT1}\nv_lshrrev_b32 v{t+1}, 16, v{t+1}')
        a(f'v_mul_u32_u24 v{t+2}, 10, v{t+1}\nv_sub_u32 v{t+2}, v{t}, v{t+2}\nv_min_u32 v{t+2}, 8, v{t+2}\nv_mul_u32_u24 v{t+1}, 36, v{t+1}\nv_lshl_add_u32 v{vW+i}, v{t+2}, 2, v{t+1}')
    loader(a, 'K1kv', 'R', 'T', 128, 64*36, kv=True)
    a('s_endpgm\nK1kv_cp:')
    setup_R(a, 'S', 1152, sRow0, 'rd')
    a(f'v_lshrrev_b32 v{t}, 5, v0\nv_lshlrev_b32 v{t}, 3, v{t}\nv_bfe_u32 v{t+1}, v0, 2, 2\nv_add_u32 v{t}, v{t}, v{t+1}\nv_mul_u32_u24 v{t}, 40, v{t}')
    a(f'v_bfe_u32 v{t+1}, v0, 4, 1\nv_lshl_add_u32 v{t}, v{t+1}, 5, v{t}\nv_and_b32 v{t+1}, 3, v0\nv_lshl_add_u32 v{t}, v{t+1}, 3, v{t}\nv_add_u32 v{vRW}, {WOFF}, v{t}')
    compute(a, 'K1kv', 'R', 'T', kv=True)
    a(f's_lshl_b32 s33, s3, 2\ns_add_u32 s33, s33, s{sWv}\ns_mul_i32 s34, s33, {KVT}')
    K = vA; V = vA+16
    for i in range(4): a(f'v_cvt_pk_bf16_f32 v{t+i}, v{K+2*i}, v{K+2*i+1}')
    a(f'v_lshlrev_b32 v{t+8}, 4, v0\nbuffer_store_dwordx4 v[{t}:{t+3}], v{t+8}, s[{sO}:{sO+3}], s34 offen')
    a(f'v_cvt_pk_bf16_f32 v{t+4}, v{K+8}, v{K+9}\nv_mov_b32 v{t+5}, 0x3f80\nv_lshlrev_b32 v{t+9}, 3, v0')
    a(f'v_mul_f32 v{t+6}, v{K}, v{K}')
    for i in range(1, 8): a(f'v_fmac_f32 v{t+6}, v{K+i}, v{K+i}')
    a(f'v_mul_f32 v{t+7}, v{K+8}, v{K+8}\nv_fmac_f32 v{t+7}, v{K+9}, v{K+9}')
    a(f'v_cmp_gt_u32 vcc, 32, v0\ns_nop 1\nv_cndmask_b32 v{t+7}, 0, v{t+7}, vcc\nv_add_f32 v{t+6}, v{t+6}, v{t+7}')
    a(f's_and_saveexec_b64 s[54:55], vcc\nbuffer_store_dwordx2 v[{t+4}:{t+5}], v{t+9}, s[{sO}:{sO+3}], s34 offen offset:1024\ns_mov_b64 exec, s[54:55]')
    a(f'v_mov_b32 v{t+7}, v{t+6}\ns_nop 1\nv_permlane32_swap_b32 v{t+6}, v{t+7}\nv_add_f32 v{t+6}, v{t+6}, v{t+7}')
    for off in (0x041F, 0x081F, 0x101F, 0x201F, 0x401F):
        a(f'ds_swizzle_b32 v{t+7}, v{t+6} offset:{off}\ns_waitcnt lgkmcnt(0)\nv_max_f32 v{t+6}, v{t+6}, v{t+7}')
    a(f's_lshl_b32 s35, s33, 2\ns_add_u32 s35, s35, {WS_KMX-WS_KV}\nv_mov_b32 v{t+10}, 0\nv_cmp_eq_u32 vcc, 0, v0')
    a(f's_and_saveexec_b64 s[54:55], vcc\nbuffer_store_dword v{t+6}, v{t+10}, s[{sO}:{sO+3}], s35 offen\ns_mov_b64 exec, s[54:55]')
    a(f'v_and_b32 v{t+8}, 31, v0\nv_lshrrev_b32 v{t+9}, 5, v0\nv_mul_u32_u24 v{t+9}, 20, v{t+9}\nv_add_u32 v{t+9}, v{t+9}, v{t+8}\nv_lshlrev_b32 v{t+9}, 4, v{t+9}')
    a(f'v_cmp_eq_u32 s[56:57], 18, v{t+8}\nv_cmp_eq_u32 s[58:59], 19, v{t+8}\nv_cmp_ge_u32 vcc, 19, v{t+8}\nv_mov_b32 v{t+10}, 0x3f803f80')
    for m in range(2):
        for i in range(4):
            a(f'v_cvt_pk_bf16_f32 v{t+4*m+i}, v{V+8*m+2*i}, v{V+8*m+2*i+1}\nv_cndmask_b32 v{t+4*m+i}, v{t+4*m+i}, v{t+10}, s[56:57]\nv_cndmask_b32 v{t+4*m+i}, v{t+4*m+i}, 0, s[58:59]')
    a(f's_and_saveexec_b64 s[54:55], vcc')
    for m in range(2): a(f'buffer_store_dwordx4 v[{t+4*m}:{t+4*m+3}], v{t+9}, s[{sO}:{sO+3}], s34 offen offset:{1280+640*m}')
    a('s_mov_b64 exec, s[54:55]')
    if STAMP:
        a('s_waitcnt vmcnt(0)'); stamp(a, 4); stamp_flush(a, 5, 90, VST)
    a('s_endpgm')
    a('K1_wt:')
    a('s_sub_u32 s3, s2, 208\ns_waitcnt lgkmcnt(0)')
    srd(a, 8, 38, 2048*578); srd(a, 12, 40, 2048*578); srd(a, 16, 50, 289*16384, WS_WT)
    a('v_lshlrev_b32 v2, 4, v0\ns_mov_b32 s26, s10\ns_mov_b32 s27, s11')
    for k in range(3):
        a(f's_add_u32 s22, s3, {48*k}\ns_mul_i32 s22, s22, 9248')
        for n in range(3):
            if n == 2: a(f's_cmp_ge_u32 s{sW8}, 4\ns_cbranch_scc1 K1_wt_sk{k}')
            a(f's_add_u32 s20, s{sW8}, {8*n}\ns_cmp_lt_u32 s20, 10\ns_cselect_b32 s24, s8, s12\ns_cselect_b32 s25, s9, s13\ns_cselect_b32 s21, 0, 10\ns_sub_u32 s21, s20, s21')
            a(f's_lshl_b32 s21, s21, 10\ns_add_u32 s33, s22, s21\ns_lshl_b32 s20, s20, 10\ns_add_u32 m0, s20, {20480*k}\ns_nop 0\nbuffer_load_dwordx4 v2, s[24:27], s33 offen lds')
        a(f'K1_wt_sk{k}:')
    a(f'v_and_b32 v3, 15, v0\nv_lshrrev_b32 v4, 4, v0\ns_lshl_b32 s20, s{sW8}, 2\nv_add_u32 v4, s20, v4')
    a('v_mul_u32_u24 v5, 578, v3\nv_lshl_add_u32 v5, v4, 1, v5')
    a('v_lshlrev_b32 v6, 14, v4\nv_lshl_add_u32 v6, v3, 3, v6')
    a(f's_mov_b32 s34, {f32bits(2.0/(2048*576))}\nv_mov_b32 v8, s34\nv_mov_b32 v9, {f32bits(1.0/(2048*576))}\nv_cmp_eq_u32 vcc, 0, v4\ns_nop 1\nv_cndmask_b32 v9, v8, v9, vcc')
    for i in range(20): a(f'v_mov_b32 v{10+i}, 0')
    a(f'v_add_u32 v30, {9*32*16384}, v6')
    stamp(a, 1)
    a('s_waitcnt vmcnt(0)\ns_barrier')
    stamp(a, 2)
    a('s_mov_b32 s21, 0')
    a('K1_wt_task:')
    a('s_mul_i32 s22, s21, 48\ns_add_u32 s22, s22, s3\ns_cmp_ge_u32 s22, 128\ns_cbranch_scc1 K1_wt_done')
    a('s_lshl_b32 s22, s22, 7')
    a('s_mul_i32 s23, s21, 20480\nv_add_u32 v7, s23, v5')
    for it in range(10): a(f'ds_read_u16_d16_hi v{10+2*it}, v7 offset:{64*it}\nds_read_u16_d16_hi v{11+2*it}, v7 offset:{10240+64*it}')
    for it in range(10):
        sc = 'v9' if it in (0, 9) else 's34'
        p = 32 + 2*it
        a(f's_waitcnt lgkmcnt({min(15, 18-2*it)})\nv_mul_f32 v{p}, {sc}, v{10+2*it}\nv_mul_f32 v{p+1}, {sc}, v{11+2*it}')
        if it < 9: a(f's_add_u32 s33, s22, {it*32*16384}\nbuffer_store_dwordx2 v[{p}:{p+1}], v6, s[16:19], s33 offen')
        else: a(f'buffer_store_dwordx2 v[{p}:{p+1}], v30, s[16:19], s22 offen')
    a('s_add_u32 s21, s21, 1\ns_cmp_lt_u32 s21, 3\ns_cbranch_scc1 K1_wt_task')
    a('K1_wt_done:')
    if PF and a.pf_later:
        a(f's_lshl_b32 s20, s3, 3\ns_add_u32 s20, s20, s{sW8}\ns_lshl_b32 s20, s20, 6\nv_add_u32 v2, s20, v0\nv_lshlrev_b32 v2, 7, v2')
        a('s_load_dwordx2 s[36:37], s[0:1], 56')
        pc_addr(a, 38, 'K2_base', 'K1_pc2')
        a('s_waitcnt lgkmcnt(0)')
        srd(a, 8, 36, 576*1152); srd(a, 12, 38, a.pf_later)
        a(f'buffer_load_dword v3, v2, s[8:11], 0 offen\nv_subrev_u32 v4, {5184*128}, v2\nbuffer_load_dword v5, v4, s[12:15], 0 offen\ns_waitcnt vmcnt(0)')
    if STAMP:
        a('s_waitcnt vmcnt(0)'); stamp(a, 3); stamp(a, 4); stamp_flush(a, 5, 90, VST)
    a('K1_end:\ns_endpgm')
```

```python
from common import *
import numpy as np
CH = 20480; LDS_X = 3*CH; LDS = LDS_X + 8192
NV = 168
sWv = 3
def _bf(x): return bf16(float(x))
def tab_F1():
    out = []
    for w in range(2):
        for j in range(4):
            for l in range(64):
                i, kh = l & 31, l >> 5
                c = 16*w + (i >> 1); ro = i & 1
                for jj in range(8):
                    a = 8*j + 4*kh + (jj >> 1); ri = jj & 1
                    th = 2*math.pi*a*c/32
                    v = (math.cos(th) if ri == ro else (math.sin(th) if ri == 1 else -math.sin(th)))
                    out.append(_bf(v))
    return np.array(out, np.uint16).tobytes()
def tab_CS():
    out = []
    for dt in range(2):
        for st in range(4):
            for cs in range(2):
                for l in range(64):
                    i, kh = l & 31, l >> 5
                    d = 32*dt + i
                    for jj in range(8):
                        b = 16*st + 8*(jj >> 2) + 4*kh + (jj & 3)
                        th = 2*math.pi*b*d/64
                        out.append(_bf(math.cos(th) if cs == 0 else math.sin(th)))
    return np.array(out, np.uint16).tobytes()
def tab_TW1():
    out = []
    for w in range(2):
        for mt in range(2):
            for R2 in range(8):
                for l in range(64):
                    i, h = l & 31, l >> 5
                    c = 16*w + (i >> 1)
                    for R in (2*R2, 2*R2+1):
                        g, r = R >> 2, R & 3
                        b = 32*mt + 8*g + 4*h + r
                        ph = 2*math.pi*b*c/2048
                        out += [math.cos(ph), math.sin(ph) if (i & 1) == 0 else -math.sin(ph)]
    return np.array(out, np.float32).tobytes()
def tab_TW2():
    out = []
    for w in range(2):
        for bt in range(2):
            for g in range(4):
                for l in range(64):
                    i, h = l & 31, l >> 5
                    b = 32*bt + i
                    for P in range(2):
                        c = 16*w + 4*g + 2*h + P
                        ph = 2*math.pi*b*c/2048
                        out += [math.cos(ph), math.sin(ph)]
    return np.array(out, np.float32).tobytes()
def tab_F4():
    out = []
    for nt in range(2):
        for st in range(4):
            w2, u = st >> 1, st & 1
            for l in range(64):
                i, kh = l & 31, l >> 5
                a = 16*nt + (i >> 1); ro = i & 1
                for jj in range(8):
                    q = jj >> 1; ri = jj & 1
                    c = 16*w2 + 4*(2*u + (q >> 1)) + 2*kh + (q & 1)
                    th = 2*math.pi*a*c/32
                    v = (math.cos(th) if ri == ro else (-math.sin(th) if ri == 1 else math.sin(th)))
                    out.append(_bf(v))
    return np.array(out, np.uint16).tobytes()
OF1, OCS, OTW1, OTW2, OF4 = 0, 8192, 8192+16384, 8192+16384+32768, 8192+16384+32768+16384
def tables():
    b = tab_F1() + tab_CS() + tab_TW1() + tab_TW2() + tab_F4()
    assert len(b) == OF4 + 8192
    return data_text('FTAB', b)
DPP = 'quad_perm:[1,0,3,2] row_mask:0xf bank_mask:0xf'

FUSE = False
def fft_wave(a):
    XA, F1, D, TW, PB, PS, CS, WA, WB, T = 8, 40, 56, 88, 8, 24, 88, 40, 152, 2
    def wreg(k): return (WA + 2*k) if k < 8 else (WB + 2*(k-8))
    a(f's_sub_u32 s4, s{sWv}, 8\ns_and_b32 s5, s4, 1\ns_lshr_b32 s4, s4, 1\ns_lshl_b32 s6, s2, 1\ns_add_u32 s6, s6, s4')
    a('s_cmp_ge_u32 s6, 289\ns_cbranch_scc1 K2_end')
    if os.environ.get('NOFFT'): a('s_branch K2_end')
    a('s_setprio %s' % os.environ.get('FFTPRIO', '3'))
    pc_addr(a, 24, 'FTAB', 'K2_pc1')
    a('s_waitcnt lgkmcnt(0)')
    srd(a, 8, 40, 288*8192, WS_XC); srd(a, 12, 40, 289*16384, WS_WT); srd(a, 16, 40, 576*4096, WS_ZC); srd(a, 20, 24, OF4+8192)
    a('s_cmp_eq_u32 s6, 288\ns_cselect_b32 s7, 0, s6\ns_lshl_b32 s28, s7, 13\ns_add_u32 s29, s28, 4096')
    a('v_and_b32 v1, 31, v0\nv_lshrrev_b32 v6, 5, v0\nv_lshlrev_b32 v7, 2, v1\nv_lshl_add_u32 v7, v6, 10, v7')
    for mt in range(2):
        for j in range(4):
            for q in range(4):
                off = 2048*j + 256*q + 128*mt
                a(f'buffer_load_dword v{XA+16*mt+4*j+q}, v7, s[8:11], s{28 if off < 4096 else 29} offen offset:{off & 4095}')
    a('v_lshlrev_b32 v160+0, 4, v0'.replace('v160+0', 'v168') if False else '')
    a('s_barrier')
    a('v_lshlrev_b32 v5, 4, v0')
    def tload(dst, off_expr_s, imm):
        a(f'buffer_load_dwordx4 v[{dst}:{dst+3}], v5, s[20:23], s{off_expr_s} offen offset:{imm}')
    a(f's_lshl_b32 s30, s5, 12\ns_add_u32 s30, s30, {OF1}')
    for j in range(4): tload(F1+4*j, 30, 1024*j)
    for mt in range(2):
        for half in range(2):
            a(f's_mul_i32 s30, s5, 16384\ns_add_u32 s30, s30, {OTW1 + 8192*mt + 4096*half}')
            for k in range(4): tload(TW + 32*mt + 16*half + 4*k, 30, 1024*k)
    a('v_and_b32 v2, 1, v0\nv_cmp_eq_u32 vcc, 1, v2\nv_mov_b32 v3, 0x80008000\nv_mov_b32 v4, 0')
    a('s_nop 0\nv_cndmask_b32 v6, v4, v3, vcc\nv_cndmask_b32 v7, v3, v4, vcc')
    a('v_mov_b32 v2, -1.0\nv_mov_b32 v3, 1.0\nv_cndmask_b32 v1, v2, v3, vcc')
    stamp(a, 1, 92)
    a('s_waitcnt vmcnt(20)')
    a('s_cmp_eq_u32 s6, 0\ns_cbranch_scc1 K2f_sp0\ns_cmp_eq_u32 s6, 288\ns_cbranch_scc0 K2f_nosp')
    for k in range(32): a(f'v_lshrrev_b32 v{XA+k}, 16, v{XA+k}')
    a('s_branch K2f_nosp\nK2f_sp0:')
    for k in range(32): a(f'v_and_b32 v{XA+k}, 0xffff, v{XA+k}')
    a('K2f_nosp:')
    a('s_waitcnt vmcnt(16)\ns_nop 1')
    for mt in range(2):
        for j in range(4):
            c = '0' if j == 0 else f'v[{D+16*mt}:{D+16*mt+15}]'
            a(f'v_mfma_f32_32x32x16_bf16 v[{D+16*mt}:{D+16*mt+15}], v[{XA+16*mt+4*j}:{XA+16*mt+4*j+3}], v[{F1+4*j}:{F1+4*j+3}], {c}')
    a('s_barrier')
    a('s_waitcnt vmcnt(0)\ns_nop 7\ns_nop 3')
    def cmul_lane(dreg, creg, sreg, tdst):
        a(f'v_mul_f32 v{tdst}, v{dreg}, v{creg}\nv_fmac_f32_dpp v{tdst}, v{dreg}, v{sreg} {DPP}')
    for mt in range(2):
        for R2 in range(8):
            tw = TW + 32*mt + 4*R2; d = D + 16*mt + 2*R2
            cmul_lane(d, tw, tw+1, T); cmul_lane(d+1, tw+2, tw+3, T+1)
            a(f'v_cvt_pk_bf16_f32 v{PB+8*mt+R2}, v{T}, v{T+1}')
    a('s_nop 1')
    for k in range(16): a(f'v_xor_b32_dpp v{PS+k}, v{PB+k}, v6 {DPP}')
    for dt in range(2):
        for half in range(2):
            a(f's_mov_b32 s30, {OCS + 8192*dt + 4096*half}')
            for k in range(4): tload(CS + 32*dt + 16*half + 4*k, 30, 1024*k)
    a('v_and_b32 v2, 31, v0\nv_lshrrev_b32 v2, 1, v2\ns_lshl_b32 s30, s5, 4\nv_add_u32 v2, s30, v2\nv_lshlrev_b32 v2, 3, v2\nv_lshrrev_b32 v3, 5, v0\nv_lshl_add_u32 v4, v3, 10, v2')
    def wload(dt):
        for g in range(4):
            a(f's_lshl_b32 s30, s6, 14\ns_add_u32 s30, s30, {8192*dt + 2048*g}')
            for r in range(4):
                k = 4*g + r
                a(f'buffer_load_dwordx2 v[{wreg(k)}:{wreg(k)+1}], v4, s[12:15], s30 offen offset:{256*r}')
    wload(0)
    stamp(a, 2, 92)
    a('s_barrier')
    a('s_waitcnt vmcnt(16)')
    for dt in range(2):
        first = True
        for st in range(4):
            for cs in range(2):
                src = (PB if cs == 0 else PS) + 4*st
                c = '0' if first else f'v[{D+16*dt}:{D+16*dt+15}]'; first = False
                f = CS + 32*dt + 8*st + 4*cs
                a(f'v_mfma_f32_32x32x16_bf16 v[{D+16*dt}:{D+16*dt+15}], v[{f}:{f+3}], v[{src}:{src+3}], {c}')
    a('s_waitcnt vmcnt(0)\ns_nop 7\ns_nop 3')
    def wmul(dt):
        for k in range(0, 16, 2):
            for e in range(2):
                wr = wreg(k+e); d = D + 16*dt + k + e
                a(f'v_mul_f32 v{wr+1}, v{wr+1}, v1')
                cmul_lane(d, wr, wr+1, T+e)
            a(f'v_cvt_pk_bf16_f32 v{PB+8*dt+(k>>1)}, v{T}, v{T+1}')
    wmul(0)
    wload(1)
    a('s_barrier')
    a('s_waitcnt vmcnt(0)')
    wmul(1)
    a('s_nop 1')
    for k in range(16): a(f'v_xor_b32_dpp v{PS+k}, v{PB+k}, v7 {DPP}')
    def t2reg(bt, g): return (WA if bt == 0 else WB) + 4*g
    for bt in range(2):
        a(f's_lshl_b32 s30, s5, 13\ns_add_u32 s30, s30, {OTW2 + 4096*bt}')
        for g in range(4): tload(t2reg(bt, g), 30, 1024*g)
    for bt in range(2):
        first = True
        for st in range(4):
            for cs in range(2):
                src = (PB if cs == 0 else PS) + 4*st
                c = '0' if first else f'v[{D+16*bt}:{D+16*bt+15}]'; first = False
                f = CS + 32*bt + 8*st + 4*cs
                a(f'v_mfma_f32_32x32x16_bf16 v[{D+16*bt}:{D+16*bt+15}], v[{src}:{src+3}], v[{f}:{f+3}], {c}')
    a('s_barrier')
    for nt in range(2):
        a(f's_mov_b32 s30, {OF4 + 4096*nt}')
        for st in range(4): tload(CS + 16*nt + 4*st, 30, 1024*st)
    a('s_waitcnt vmcnt(8)\ns_nop 7')
    E = 8
    for bt in range(2):
        for g in range(4):
            for P in range(2):
                d = D + 16*bt + 4*g + 2*P; tw = t2reg(bt, g) + 2*P
                a(f'v_mul_f32 v{T}, v{d}, v{tw}\nv_mul_f32 v{T+1}, v{d+1}, v{tw}')
                a(f'v_fma_f32 v{T}, -v{d+1}, v{tw+1}, v{T}\nv_fma_f32 v{T+1}, v{d}, v{tw+1}, v{T+1}')
                a(f'v_cvt_pk_bf16_f32 v{E+8*bt+2*g+P}, v{T}, v{T+1}')
    a(f's_sub_u32 s30, s{sWv}, 8\ns_lshl_b32 s30, s30, 11\ns_add_u32 s30, s30, {LDS_X}\nv_add_u32 v2, s30, v5')
    a('s_cmp_eq_u32 s5, 0\ns_cbranch_scc1 K2f_w0')
    a('ds_write_b128 v2, v[8:11]\nds_write_b128 v2, v[12:15] offset:1024')
    for k in range(8): a(f'v_mov_b32 v{32+k}, v{16+k}')
    a('s_branch K2f_wj\nK2f_w0:')
    a('ds_write_b128 v2, v[16:19]\nds_write_b128 v2, v[20:23] offset:1024')
    for k in range(8): a(f'v_mov_b32 v{24+k}, v{8+k}')
    a('K2f_wj:')
    stamp(a, 3, 92)
    a('s_waitcnt lgkmcnt(0)\ns_barrier')
    a('v_xor_b32 v2, 2048, v2')
    a('s_cmp_eq_u32 s5, 0\ns_cbranch_scc1 K2f_r0')
    a('ds_read_b128 v[24:27], v2\nds_read_b128 v[28:31], v2 offset:1024\ns_branch K2f_rj\nK2f_r0:')
    a('ds_read_b128 v[32:35], v2\nds_read_b128 v[36:39], v2 offset:1024\nK2f_rj:')
    a('s_waitcnt vmcnt(0) lgkmcnt(0)')
    for nt in range(2):
        for st in range(4):
            c = '0' if st == 0 else f'v[{D+16*nt}:{D+16*nt+15}]'
            f = CS + 16*nt + 4*st
            a(f'v_mfma_f32_32x32x16_bf16 v[{D+16*nt}:{D+16*nt+15}], v[{24+4*st}:{24+4*st+3}], v[{f}:{f+3}], {c}')
    a('v_and_b32 v2, 31, v0\nv_lshrrev_b32 v3, 1, v2\nv_lshlrev_b32 v3, 7, v3\nv_lshrrev_b32 v4, 5, v0\nv_lshl_add_u32 v3, v4, 3, v3\nv_and_b32 v2, 1, v2')
    a('s_lshl_b32 s31, s5, 6\ns_add_u32 s31, s31, s28')
    a('s_cmp_eq_u32 s6, 0\ns_cbranch_scc1 K2f_st0\ns_cmp_eq_u32 s6, 288\ns_cbranch_scc1 K2f_st288')
    a('v_lshl_add_u32 v3, v2, 12, v3\ns_branch K2f_stj')
    a('K2f_st288:\nv_add_u32 v3, 4096, v3\nK2f_st0:\nv_cmp_eq_u32 vcc, 0, v2\ns_nop 1\ns_and_b64 exec, exec, vcc')
    a('K2f_stj:\ns_nop 7')
    for nt in range(2):
        for g in range(4):
            d = D + 16*nt + 4*g; p = 8 + 2*(4*nt+g)
            a(f'v_cvt_pk_bf16_f32 v{p}, v{d}, v{d+1}\nv_cvt_pk_bf16_f32 v{p+1}, v{d+2}, v{d+3}')
            a(f'buffer_store_dwordx2 v[{p}:{p+1}], v3, s[16:19], s31 offen offset:{2048*nt + 16*g}' + (' sc1' if FUSE else ''))
    if STAMP:
        a('s_mov_b64 exec, -1\ns_waitcnt vmcnt(0)\ns_lshl_b32 s26, s3, 6\nv_add_u32 v123, s26, v0'); stamp(a, 4, 92); stamp_flush(a, 5, 92)
    if FUSE: a('s_waitcnt vmcnt(0)')
    a('s_endpgm')

def attn_wave(a):
    Q1, Q2, S, P, O = 2, 6, [8, 24], 40, 48
    Kf, Vf = [64, 72], [80, 88]
    aK1, aK2, aV = [96, 99], [97, 100], [98, 101]
    T = 104
    if os.environ.get('NOXQ'): a(f's_lshr_b32 s4, s2, 2\ns_and_b32 s5, s2, 3\ns_lshl_b32 s5, s5, 3\ns_add_u32 s5, s5, s{sWv}')
    else:
        a(f's_and_b32 s4, s2, 7\ns_lshl_b32 s4, s4, 3\ns_lshr_b32 s5, s2, 5\ns_add_u32 s4, s4, s5\ns_lshr_b32 s5, s2, 3\ns_and_b32 s5, s5, 3\ns_lshl_b32 s5, s5, 3\ns_add_u32 s5, s5, s{sWv}')
    a('s_waitcnt lgkmcnt(0)')
    srd(a, 8, 40, NB_ACT, WS_Q); srd(a, 12, 40, 64*KVT, WS_KV); srd(a, 16, 40, NB_ACT, WS_O)
    srd(a, 28, 40, 256, WS_KMX)
    a('v_lshlrev_b32 v102, 4, v0\nv_lshlrev_b32 v116, 2, v0\nbuffer_load_dword v117, v116, s[28:31], 0 offen')
    a(f's_mul_i32 s20, s{sWv}, {KVT}')
    def dmap(n, g_s, l_s):
        if n == 2: a('s_mov_b32 exec_hi, 0')
        a(f's_add_u32 m0, s{l_s}, {1024*n}\ns_add_u32 s27, s{g_s}, {1024*n}\nbuffer_load_dwordx4 v102, s[12:15], s27 offen lds')
        if n == 2: a('s_mov_b32 exec_hi, -1')
    a(f'v_and_b32 v1, 31, v0\ns_lshl_b32 s6, s4, 5\nv_add_u32 v{T}, s6, v1\ns_movk_i32 s7, 1152\nv_mul_lo_u32 v{T}, v{T}, s7')
    a(f'v_lshrrev_b32 v{T+1}, 5, v0\nv_lshl_add_u32 v103, v{T+1}, 3, v{T}\ns_mul_i32 s7, s5, 36')
    a(f'buffer_load_dwordx2 v[{Q1}:{Q1+1}], v103, s[8:11], s7 offen\nbuffer_load_dwordx2 v[{Q1+2}:{Q1+3}], v103, s[8:11], s7 offen offset:16')
    a(f'buffer_load_dword v{Q2}, v{T}, s[8:11], s7 offen offset:32')
    a('s_mov_b32 s22, s20\ns_mov_b32 s23, s20')
    for n in range(3): dmap(n, 22, 23)
    a(f's_add_u32 s22, s20, {CH}\ns_add_u32 s23, s20, {CH}')
    for n in range(2): dmap(n, 22, 23)
    a(f'v_lshlrev_b32 v{aK1[0]}, 4, v0\nv_lshlrev_b32 v{aK2[0]}, 3, v1\nv_add_u32 v{aK2[0]}, 1024, v{aK2[0]}')
    a(f'v_mov_b32 v{T+2}, 19\nv_cmp_gt_u32 vcc, 19, v1\ns_nop 1\nv_cndmask_b32 v{T+2}, v{T+2}, v1, vcc')
    if False: a(f'v_subrev_u32 v{T+3}, 20, v1\nv_cmp_gt_u32 vcc, 8, v{T+3}\ns_nop 1\nv_cndmask_b32 v{T+2}, v{T+2}, 0, vcc'.replace(f'v_cndmask_b32 v{T+2}, v{T+2}, 0, vcc', f'v_mov_b32 v{T+3}, 0\nv_cndmask_b32 v{T+2}, v{T+2}, v{T+3}, vcc'))
    a(f'v_mul_u32_u24 v{T+3}, 20, v{T+1}\nv_add_u32 v{T+2}, v{T+2}, v{T+3}\nv_lshlrev_b32 v{T+2}, 4, v{T+2}\nv_add_u32 v{aV[0]}, 1280, v{T+2}')
    for r in (aK1, aK2, aV): a(f'v_add_u32 v{r[1]}, {CH}, v{r[0]}')
    for i in range(16): a(f'v_mov_b32 v{O+i}, 0')
    a('s_waitcnt vmcnt(2)')
    for ctl in ('row_shr:1', 'row_shr:2', 'row_shr:4', 'row_shr:8', 'row_bcast:15 row_mask:0xa', 'row_bcast:31 row_mask:0xc'):
        rm = '' if 'row_mask' in ctl else ' row_mask:0xf'
        a(f's_nop 1\nv_max_u32_dpp v117, v117, v117 {ctl}{rm} bank_mask:0xf')
    a('s_nop 1\nv_readlane_b32 s44, v117, 63')
    a(f'v_cmp_gt_u32 vcc, 32, v0\nv_mov_b32 v{T}, 0\ns_nop 0\nv_cndmask_b32 v{Q2}, v{T}, v{Q2}, vcc')
    a(f'v_dot2_f32_bf16 v{T}, v{Q1}, v{Q1}, v{T}')
    for r in (Q1+1, Q1+2, Q1+3, Q2): a(f's_nop 2\nv_dot2_f32_bf16 v{T}, v{r}, v{r}, v{T}')
    a(f's_nop 2\nv_mov_b32 v{T+1}, v{T}\ns_nop 1\nv_permlane32_swap_b32 v{T}, v{T+1}\nv_add_f32 v{T}, v{T}, v{T+1}')
    a(f'v_mul_f32 v{T}, s44, v{T}\nv_sqrt_f32 v{T}, v{T}\ns_nop 0\nv_mul_f32 v{T}, {f32bits(-(1+2**-6)):#x}, v{T}')
    a(f'v_mov_b32 v{T+1}, 0\nv_cvt_pk_bf16_f32 v{T}, v{T}, v{T+1}\nv_cndmask_b32 v{Q2+1}, v{T+1}, v{T}, vcc')
    stamp(a, 1, 92)
    a('s_barrier')
    stamp(a, 2, 92)
    def rdK(buf, areg, u):
        a(f'ds_read_b128 v[{Kf[buf]}:{Kf[buf]+3}], v{aK1[areg]} offset:{u*KVT}\nds_read_b64 v[{Kf[buf]+4}:{Kf[buf]+5}], v{aK2[areg]} offset:{u*KVT}')
    def rdV(buf, areg, u):
        a(f'ds_read_b128 v[{Vf[buf]}:{Vf[buf]+3}], v{aV[areg]} offset:{u*KVT}\nds_read_b128 v[{Vf[buf]+4}:{Vf[buf]+7}], v{aV[areg]} offset:{u*KVT+640}')
    def qk1(sb, kb): a(f'v_mfma_f32_32x32x16_bf16 v[{S[sb]}:{S[sb]+15}], v[{Kf[kb]}:{Kf[kb]+3}], v[{Q1}:{Q1+3}], 0')
    def qk2(sb, kb): a(f'v_mfma_f32_32x32x8bf16_1k v[{S[sb]}:{S[sb]+15}], v[{Kf[kb]+4}:{Kf[kb]+5}], v[{Q2}:{Q2+1}], v[{S[sb]}:{S[sb]+15}]')
    def rdK1(buf, areg, u): a(f'ds_read_b128 v[{Kf[buf]}:{Kf[buf]+3}], v{aK1[areg]} offset:{u*KVT}')
    def rdK2(buf, areg, u): a(f'ds_read_b64 v[{Kf[buf]+4}:{Kf[buf]+5}], v{aK2[areg]} offset:{u*KVT}')
    def rdV1(buf, areg, u): a(f'ds_read_b128 v[{Vf[buf]}:{Vf[buf]+3}], v{aV[areg]} offset:{u*KVT}')
    def rdV2(buf, areg, u): a(f'ds_read_b128 v[{Vf[buf]+4}:{Vf[buf]+7}], v{aV[areg]} offset:{u*KVT+640}')
    def pv(h, vb): a(f'v_mfma_f32_32x32x16_bf16 v[{O}:{O+15}], v[{Vf[vb]+4*h}:{Vf[vb]+4*h+3}], v[{P+4*h}:{P+4*h+3}], v[{O}:{O+15}]')
    rdK(0, 0, 0); rdK(1, 0, 1); rdV(0, 0, 0)
    for i in range(4): a(f'v_mov_b32 v{P+4+i}, 0\nv_mov_b32 v{Vf[1]+4+i}, 0')
    a('s_waitcnt lgkmcnt(4)'); qk1(0, 0); qk2(0, 0)
    a(f's_mov_b32 s24, 0\ns_mov_b32 s25, {2*CH}')
    a('s_nop 7\ns_nop 3')
    a('.p2align 6\nK2a_loop:')
    for u in range(8):
        b = u & 1; s = S[b]
        ex = lambda lo, hi: [a(f'{"v_mov_b32" if os.environ.get("NOEXP") else "v_exp_f32"} v{s+i}, v{s+i}') for i in range(lo, hi)]
        cv = lambda lo, hi: [a(f'v_cvt_pk_bf16_f32 v{P+i}, v{s+2*i}, v{s+2*i+1}') for i in range(lo, hi)]
        ka, ku = (0, u+2) if u + 2 < 8 else (1, u+2-8)
        va, vu = (0, u+1) if u + 1 < 8 else (1, 0)
        if u == 6:
            a('s_waitcnt vmcnt(0) lgkmcnt(0)\ns_barrier')
            a(f's_add_u32 s22, s22, {CH}\ns_add_u32 s23, s20, s25')
        else: a('s_waitcnt lgkmcnt(0)')
        qk1(1-b, 1-b)
        rdK1(b, ka, ku)
        if u in (6, 7, 0): dmap({6: 0, 7: 1, 0: 2}[u], 22, 23)
        ex(0, 5)
        pv(1, 1-b)
        rdK2(b, ka, ku)
        ex(5, 8); cv(0, 4)
        qk2(1-b, 1-b)
        rdV1(1-b, va, vu)
        ex(8, 12)
        pv(0, b)
        rdV2(1-b, va, vu)
        ex(12, 16); cv(4, 8)
    for r in (aK1, aK2, aV): a(f'v_mov_b32 v{r[0]}, v{r[1]}')
    for r, k in ((aK1, 0), (aK2, 1), (aV, 2)): a(f'v_add_u32 v{r[1]}, s25, v{T+8+k}')
    a(f's_add_u32 s25, s25, {CH}\ns_cmp_ge_u32 s25, {3*CH}\ns_cselect_b32 s25, 0, s25')
    a('s_add_u32 s24, s24, 1\ns_cmp_lt_u32 s24, 8\ns_cbranch_scc1 K2a_loop')
    a('s_nop 1'); pv(1, 1)
    a('s_waitcnt vmcnt(0) lgkmcnt(0)\ns_nop 7\ns_nop 7')
    stamp(a, 3, 92)
    a(f'v_mov_b32 v{T}, v{O+10}\nv_mov_b32 v{T+1}, v{O+10}\ns_nop 1\nv_permlane32_swap_b32 v{T}, v{T+1}')
    a(f's_mov_b32 s26, {f32bits(2.0**-80)}\nv_cmp_nle_f32 vcc, s26, v{T}\ns_nop 1\ns_nop 3\ns_cbranch_vccnz K2a_slow')
    a('K2a_fin:')
    a(f'v_rcp_f32 v{T}, v{T}\ns_nop 0')
    for i in range(10): a(f'v_mul_f32 v{O+i}, v{O+i}, v{T}')
    for i in range(5): a(f'v_cvt_pk_bf16_f32 v{P+i}, v{O+2*i}, v{O+2*i+1}')
    sc = ' sc1' if FUSE else ''
    a(f'buffer_store_dwordx2 v[{P}:{P+1}], v103, s[16:19], s7 offen{sc}\nbuffer_store_dwordx2 v[{P+2}:{P+3}], v103, s[16:19], s7 offen offset:16{sc}')
    a(f'v_cmp_gt_u32 vcc, 32, v0\ns_nop 1\ns_and_b64 exec, exec, vcc\nbuffer_store_dword v{P+4}, v103, s[16:19], s7 offen offset:32{sc}')
    if STAMP and not FUSE:
        a('s_mov_b64 exec, -1\ns_waitcnt vmcnt(0)'); stamp(a, 4, 92); stamp_flush(a, 5, 92)
    if FUSE: a('s_mov_b64 exec, -1\ns_branch K23_tail')
    else: a('s_endpgm')
    a('K2a_slow:')
    a(f'v_lshlrev_b32 v{T+4}, 4, v0\nv_lshlrev_b32 v{T+5}, 3, v1\nv_add_u32 v{T+5}, 1024, v{T+5}\nv_mov_b32 v{T+6}, v{T+10}')
    a(f'v_and_b32 v{Q2+1}, 0, v{Q2+1}\nv_mov_b32 v{T+7}, 0xff7fffff\ns_mov_b32 s26, 0')
    a('K2a_s1:')
    a(f'buffer_load_dwordx4 v[{Kf[0]}:{Kf[0]+3}], v{T+4}, s[12:15], s26 offen\nbuffer_load_dwordx2 v[{Kf[0]+4}:{Kf[0]+5}], v{T+5}, s[12:15], s26 offen\ns_waitcnt vmcnt(0)')
    qk1(0, 0); qk2(0, 0); a('s_nop 7\ns_nop 7')
    for i in range(16): a(f'v_max_f32 v{T+7}, v{T+7}, v{S[0]+i}')
    a(f's_add_u32 s26, s26, {KVT}\ns_cmp_lt_u32 s26, {64*KVT}\ns_cbranch_scc1 K2a_s1')
    a(f'v_mov_b32 v{T}, v{T+7}\ns_nop 1\nv_permlane32_swap_b32 v{T}, v{T+7}\nv_max_f32 v{T+7}, v{T+7}, v{T}')
    for i in range(16): a(f'v_mov_b32 v{O+i}, 0')
    a('s_mov_b32 s26, 0\nK2a_s2:')
    a(f'buffer_load_dwordx4 v[{Kf[0]}:{Kf[0]+3}], v{T+4}, s[12:15], s26 offen\nbuffer_load_dwordx2 v[{Kf[0]+4}:{Kf[0]+5}], v{T+5}, s[12:15], s26 offen')
    a(f'buffer_load_dwordx4 v[{Vf[0]}:{Vf[0]+3}], v{T+6}, s[12:15], s26 offen\nbuffer_load_dwordx4 v[{Vf[0]+4}:{Vf[0]+7}], v{T+6}, s[12:15], s26 offen offset:640\ns_waitcnt vmcnt(0)')
    qk1(0, 0); qk2(0, 0); a('s_nop 7\ns_nop 7')
    for i in range(16): a(f'v_sub_f32 v{S[0]+i}, v{S[0]+i}, v{T+7}\nv_exp_f32 v{S[0]+i}, v{S[0]+i}')
    a('s_nop 0')
    for i in range(8): a(f'v_cvt_pk_bf16_f32 v{P+i}, v{S[0]+2*i}, v{S[0]+2*i+1}')
    a('s_nop 1')
    a(f'v_mfma_f32_32x32x16_bf16 v[{O}:{O+15}], v[{Vf[0]}:{Vf[0]+3}], v[{P}:{P+3}], v[{O}:{O+15}]')
    a(f'v_mfma_f32_32x32x16_bf16 v[{O}:{O+15}], v[{Vf[0]+4}:{Vf[0]+7}], v[{P+4}:{P+7}], v[{O}:{O+15}]')
    a(f's_add_u32 s26, s26, {KVT}\ns_cmp_lt_u32 s26, {64*KVT}\ns_cbranch_scc1 K2a_s2')
    a('s_nop 7\ns_nop 7')
    a(f'v_mov_b32 v{T}, v{O+10}\nv_mov_b32 v{T+1}, v{O+10}\ns_nop 1\nv_permlane32_swap_b32 v{T}, v{T+1}\ns_branch K2a_fin')

def k2(a):
    a('K2_base:')
    a('s_cmp_ge_u32 s2, 256\ns_cbranch_scc1 K2_end')
    a('s_load_dwordx2 s[40:41], s[0:1], 80')
    a(f'v_lshrrev_b32 v1, 6, v0\ns_nop 0\nv_readfirstlane_b32 s{sWv}, v1\nv_and_b32 v0, 63, v0\ns_nop 2')
    if STAMP: a('v_lshl_add_u32 v123, v1, 6, v0')
    stamp(a, 0, 92)
    a(f's_cmp_ge_u32 s{sWv}, 8\ns_cbranch_scc1 K2_fft')
    b = Asm(); attn_wave(b)
    txt = b.text().replace("    v_mov_b32 v48, 0\n", "    v_mov_b32 v112, v96\n    v_mov_b32 v113, v97\n    v_mov_b32 v114, v98\n    v_mov_b32 v48, 0\n", 1)
    a.l.append(txt.rstrip('\n'))
    a('K2_fft:')
    fft_wave(a)
    a('K2_end:\ns_endpgm')
    if FUSE:
        import k3
        a('K23_tail:')
        ST5[0] = True
        if STAMP: a('s_lshl_b32 s26, s3, 6\nv_add_u32 v123, s26, v0')
        stamp(a, 0)
        a('s_load_dwordx2 s[42:43], s[0:1], 72')
        a('s_waitcnt vmcnt(0)\ns_barrier')
        stamp(a, 5)
        a('s_waitcnt lgkmcnt(0)')
        srd(a, 28, 42, 256)
        a(f's_cmp_lg_u32 s{sWv}, 0\ns_cbranch_scc1 K23_np')
        a('v_mov_b32 v2, 1\nv_mov_b32 v3, s2\ns_mov_b32 exec_hi, 0\ns_mov_b32 exec_lo, 1\nbuffer_store_byte v2, v3, s[28:31], 0 offen sc1\ns_mov_b64 exec, -1')
        a('s_cmp_ge_u32 s2, 192\ns_cbranch_scc1 K23_np')
        a('v_lshlrev_b32 v3, 2, v0\ns_mov_b32 s26, 0')
        a('K23_poll:\nbuffer_load_dword v2, v3, s[28:31], 0 offen sc1\ns_add_u32 s26, s26, 1\ns_waitcnt vmcnt(0)')
        a('v_cmp_ne_u32 vcc, 0x01010101, v2\ns_cmp_ge_u32 s26, 0x8000\ns_cbranch_scc1 K23_got\ns_nop 1\ns_cbranch_vccnz K23_poll')
        a('K23_got:')
        stamp(a, 6)
        a('buffer_inv sc1\ns_waitcnt vmcnt(0)')
        stamp(a, 7)
        a('K23_np:\ns_cmp_ge_u32 s2, 192\ns_cbranch_scc1 K2_end2')
        a('s_barrier')
        k3.k3(a, fused=True)
        a('K2_end2:\ns_endpgm')
```

```python
from gemm import *
def k3(a, fused=False):
    if not fused: a('s_cmp_ge_u32 s2, 192\ns_cbranch_scc1 K3_end')
    a('s_load_dwordx2 s[36:37], s[0:1], 56\ns_load_dwordx2 s[38:39], s[0:1], 64\ns_load_dwordx2 s[40:41], s[0:1], 80')
    if fused: a(f's_mov_b32 s{sW8}, s3\ns_and_b32 s{sWv}, s3, 3')
    else: lane_ids(a)
    a('s_cmp_ge_u32 s2, 96\ns_cbranch_scc1 K3_ai')
    a(f's_lshr_b32 s{sT0}, s2, 3\ns_and_b32 s{sT1}, s2, 7\ns_lshl_b32 s{sT1}, s{sT1}, 1\ns_cmp_ge_u32 s{sT0}, 6\ns_cselect_b32 s{sT2}, 1, 0\ns_add_u32 s{sT1}, s{sT1}, s{sT2}\ns_lshl_b32 s{sRow0}, s{sT1}, 7\ns_mul_i32 s{sT2}, s{sT2}, 6\ns_sub_u32 s{sT0}, s{sT0}, s{sT2}\ns_mul_i32 s{sCol0}, s{sT0}, 96')
    a('s_waitcnt lgkmcnt(0)')
    srd(a, sS, 40, NB_ACT, WS_O); srd(a, sW, 36, 576*1152); srd(a, sO, 38, 2048*2304)
    a(f's_mul_i32 s33, s{sRow0}, 2304\ns_lshl_b32 s34, s{sCol0}, 1\ns_add_u32 s33, s33, s34\ns_add_u32 s33, s33, 1152')
    def su(part): setup_R(a, 'S', 1152, sRow0, part); setup_T(a, 'W', 1152, sCol0, part)
    gemm_task(a, 'K3o', 'R', 'T', 128, 64*1152, su, 'row', 33, 2304)
    a('K3_ai:')
    a('s_sub_u32 s3, s2, 96')
    a(f's_lshr_b32 s{sT0}, s3, 3\ns_and_b32 s{sT1}, s3, 7\ns_lshl_b32 s{sT1}, s{sT1}, 1\ns_cmp_ge_u32 s{sT0}, 6\ns_cselect_b32 s{sT2}, 1, 0\ns_add_u32 s{sT1}, s{sT1}, s{sT2}\ns_lshl_b32 s{sRow0}, s{sT1}, 7\ns_mul_i32 s{sT2}, s{sT2}, 6\ns_sub_u32 s{sT0}, s{sT0}, s{sT2}\ns_mul_i32 s{sCol0}, s{sT0}, 96')
    pc_addr(a, 52, 'TTAB', 'K3_pc1')
    a('s_waitcnt lgkmcnt(0)')
    srd(a, sS, 40, 576*4096, WS_ZC); srd(a, sW, 52, 576*1152); srd(a, sO, 38, 2048*2304)
    a(f's_mul_i32 s33, s{sRow0}, 2304\ns_lshl_b32 s34, s{sCol0}, 1\ns_add_u32 s33, s33, s34')
    def su(part): setup_T(a, 'S', 4096, sRow0, part); setup_T(a, 'W', 1152, sCol0, part)
    gemm_task(a, 'K3a', 'T', 'T', 64*4096, 64*1152, su, 'row', 33, 2304)
    a('K3_end:\ns_endpgm')
```

```python
import sys
from common import *
import gemm, k1
NAME = 'concat_heads__spectral_gfnet__grouped_kv_mqa__prompt'
PFL = 0x1d000
def build(kernels=('k1',), extra_tables=''):
    hdr = []; body = ['.amdgcn_target "amdgcn-amd-amdhsa--gfx950"', '.text']; kds = []
    if 'k1' in kernels:
        hdr.append(f'; @launch kernel=k1_kernel grid=(256,1,1) block=(512,1,1) lds={gemm.BUF*gemm.NBUF}')
        a = Asm(); a.pf_later = 'TTAB-K2_base' if (('k2' in kernels and 'k3' in kernels) or 'k23' in kernels) else 0; k1.k1(a); body.append(head('k1_kernel') + a.text()); kds.append(kd('k1_kernel', gemm.NV))
    tabs = ''
    if 'k2' in kernels:
        import k2
        hdr.append(f'; @launch kernel=k2_kernel grid=(256,1,1) block=(768,1,1) lds={k2.LDS}')
        a = Asm(); k2.k2(a); body.append(head('k2_kernel') + a.text()); kds.append(kd('k2_kernel', k2.NV))
        tabs += k2.tables()
    if 'k23' in kernels:
        import k2
        k2.FUSE = True
        hdr.append(f'; @launch kernel=k2_kernel grid=(256,1,1) block=(768,1,1) lds={gemm.BUF*gemm.NBUF}')
        a = Asm(); k2.k2(a); body.append(head('k2_kernel') + a.text()); kds.append(kd('k2_kernel', k2.NV))
        tabs += k2.tables()
    if 'k3' in kernels:
        import k3
        hdr.append(f'; @launch kernel=k3_kernel grid=(192,1,1) block=(512,1,1) lds={gemm.BUF*gemm.NBUF}')
        a = Asm(); k3.k3(a); body.append(head('k3_kernel') + a.text()); kds.append(kd('k3_kernel', gemm.NV))
    return '\n'.join(hdr) + '\n' + '\n'.join(body) + '\n' + tabs + ttab_text() + ''.join(kds)
if __name__ == '__main__':
    ks = sys.argv[2].split(',') if len(sys.argv) > 2 else ['k1','k2','k3']
    open(sys.argv[1], 'w').write(build(ks))
```

```python
from common import *
PF = os.environ.get('NOPF') is None
BUF = 28672
NBUF = 5
WOFF = 16384
vS   = 2
vW   = 6
vRS  = 12
vRW  = 16
vTS  = 20
vTW  = 24
vF   = 32
vA   = 96
vT   = 144
NV   = 168
VST  = 164
sS, sW, sO = 8, 12, 16
sC, sBuf, sFill, sKS, sKW = 20, 21, 22, 23, 24
sSn, sWn = 25, 26
sT0, sT1, sT2 = 27, 28, 29
sWv = 30
sRow0, sCol0 = 31, 32
sW8 = 35

def lane_ids(a):
    if STAMP: a(f'v_mov_b32 v{VST+3}, v0')
    stamp(a, 0)
    a(f'v_lshrrev_b32 v1, 6, v0\ns_nop 0\nv_readfirstlane_b32 s{sW8}, v1\nv_and_b32 v0, 63, v0\ns_and_b32 s{sWv}, s{sW8}, 3')

def setup_R(a, which, stride, row0_s, part):
    t = vT
    if part == 'dma': a(f'v_lshrrev_b32 v{t}, 3, v0\nv_and_b32 v{t+1}, 7, v0')
    if part != 'dma': pass
    elif which == 'S':
        for q in range(4):
            a(f'v_add_u32 v{t+2}, {8*q}, v{t}\nv_lshrrev_b32 v{t+3}, 1, v{t+2}\nv_and_b32 v{t+3}, 7, v{t+3}\nv_xor_b32 v{t+3}, v{t+3}, v{t+1}')
            a(f's_lshl_b32 s{sT0}, s{sWv}, 5\ns_add_u32 s{sT0}, s{sT0}, s{row0_s}')
            a(f'v_add_u32 v{t+2}, s{sT0}, v{t+2}\ns_movk_i32 s{sT1}, {stride}\nv_mul_lo_u32 v{t+2}, v{t+2}, s{sT1}')
            a(f'v_lshl_add_u32 v{vS+q}, v{t+3}, 4, v{t+2}')
    else:
        a(f's_lshl_b32 s{sT0}, s{sWv}, 3\nv_add_u32 v{t+2}, s{sT0}, v{t}')
        a(f'v_lshrrev_b32 v{t+3}, 1, v{t+2}\nv_and_b32 v{t+3}, 7, v{t+3}\nv_xor_b32 v{t+3}, v{t+3}, v{t+1}')
        a(f'v_add_u32 v{t+2}, s{row0_s}, v{t+2}\ns_movk_i32 s{sT1}, {stride}\nv_mul_lo_u32 v{t+2}, v{t+2}, s{sT1}')
        a(f'v_lshl_add_u32 v{vW}, v{t+3}, 4, v{t+2}')
        for tt in (1, 2): a(f'v_add_u32 v{vW+tt}, {32*stride*tt}, v{vW}')
    if part == 'dma': return
    dst = vRS if which == 'S' else vRW
    a(f'v_and_b32 v{t}, 31, v0\nv_lshrrev_b32 v{t+1}, 5, v0')
    a(f'v_lshrrev_b32 v{t+2}, 1, v{t}\nv_and_b32 v{t+2}, 7, v{t+2}\nv_xor_b32 v{t+2}, v{t+2}, v{t+1}')
    a(f'v_lshlrev_b32 v{t+3}, 7, v{t}')
    if which == 'S':
        a(f's_lshl_b32 s{sT0}, s{sWv}, 12\nv_add_u32 v{t+3}, s{sT0}, v{t+3}')
    else:
        a(f'v_add_u32 v{t+3}, {WOFF}, v{t+3}')
    for j in range(4):
        a(f'v_xor_b32 v{t+4}, {2*j}, v{t+2}\nv_lshl_add_u32 v{dst+j}, v{t+4}, 4, v{t+3}')

def setup_T(a, which, stride, col0_s, part):
    t = vT
    if part == 'dma':
        a(f'v_lshrrev_b32 v{t}, 2, v0\nv_and_b32 v{t+1}, 3, v0\nv_lshlrev_b32 v{t+1}, 4, v{t+1}')
        a(f's_mov_b32 s{sT1}, {stride}')
    if part != 'dma': pass
    elif which == 'S':
        a(f's_lshl_b32 s{sT0}, s{sWv}, 5\ns_add_u32 s{sT0}, s{sT0}, s{col0_s}\ns_lshl_b32 s{sT0}, s{sT0}, 1')
        a(f'v_mul_lo_u32 v{t+2}, v{t}, s{sT1}\nv_add_u32 v{t+2}, v{t+2}, v{t+1}\nv_add_u32 v{vS}, s{sT0}, v{t+2}')
        for j in (1, 2, 3): a(f'v_add_u32 v{vS+j}, {16*stride*j}, v{vS}')
    else:
        a(f's_lshl_b32 s{sT0}, s{sWv}, 4\nv_add_u32 v{t}, s{sT0}, v{t}\nv_mul_lo_u32 v{t+2}, v{t}, s{sT1}\nv_add_u32 v{t+2}, v{t+2}, v{t+1}')
        a(f's_lshl_b32 s{sT0}, s{col0_s}, 1\nv_add_u32 v{vW}, s{sT0}, v{t+2}')
        for tt in (1, 2): a(f'v_add_u32 v{vW+tt}, {64*tt}, v{vW}')
    if part == 'dma': return
    dst = vRS if which == 'S' else vRW
    a(f'v_lshrrev_b32 v{t}, 5, v0\nv_lshlrev_b32 v{t}, 3, v{t}\nv_bfe_u32 v{t+1}, v0, 2, 2\nv_add_u32 v{t}, v{t}, v{t+1}\nv_lshlrev_b32 v{t}, 6, v{t}')
    a(f'v_bfe_u32 v{t+1}, v0, 4, 1\nv_lshl_add_u32 v{t}, v{t+1}, 5, v{t}\nv_and_b32 v{t+1}, 3, v0\nv_lshl_add_u32 v{t}, v{t+1}, 3, v{t}')
    if which == 'S':
        a(f's_lshl_b32 s{sT0}, s{sWv}, 12\nv_add_u32 v{dst}, s{sT0}, v{t}')
    else:
        a(f'v_add_u32 v{dst}, {WOFF}, v{t}')

def dma_chunk(a, kS, kW, kv=False):
    a(f's_lshl_b32 s{sT0}, s{sWv}, 12\ns_add_u32 s{sT0}, s{sT0}, s{sFill}')
    for q in range(4):
        a(f's_add_u32 m0, s{sT0}, {1024*q}\ns_nop 0\nbuffer_load_dwordx4 v{vS+q}, s[{sS}:{sS+3}], s{sKS} offen lds')
    if not kv:
        a(f's_lshl_b32 s{sT0}, s{sWv}, 10\ns_add_u32 s{sT0}, s{sT0}, s{sFill}')
        for tt in range(3):
            a(f's_add_u32 m0, s{sT0}, {WOFF + 4096*tt}\ns_nop 0\nbuffer_load_dwordx4 v{vW+tt}, s[{sW}:{sW+3}], s{sKW} offen lds')
    else:
        a(f's_mul_i32 s{sT0}, s{sWv}, 1280\ns_add_u32 s{sT0}, s{sT0}, s{sFill}')
        for i in range(5):
            a(f's_add_u32 m0, s{sT0}, {WOFF + 256*i}\ns_nop 0\nbuffer_load_dword v{vW+i}, s[{sW}:{sW+3}], s{sKW} offen lds')

def reads_l(kS, kW, j, st, kv=False):
    f = vF + 16*st
    r = []
    if kS == 'R': r.append(f'ds_read_b128 v[{f}:{f+3}], v{vTS+j}')
    else:
        for rd in range(2): r.append(f'ds_read_b64_tr_b16 v[{f+2*rd}:{f+2*rd+1}], v{vTS} offset:{1024*j+256*rd}')
    if kv:
        for tt in range(2):
            for rd in range(2): r.append(f'ds_read_b64_tr_b16 v[{f+4+4*tt+2*rd}:{f+4+4*tt+2*rd+1}], v{vTW} offset:{40*(16*j+4*rd)+2560*tt}')
    else:
        for tt in range(3):
            g = f + 4 + 4*tt
            if kW == 'R': r.append(f'ds_read_b128 v[{g}:{g+3}], v{vTW+j} offset:{4096*tt}')
            else:
                for rd in range(2): r.append(f'ds_read_b64_tr_b16 v[{g+2*rd}:{g+2*rd+1}], v{vTW} offset:{4096*tt+1024*j+256*rd}')
    return r

def set_addrs(a, kS, kW, sreg):
    for j in range(4 if kS == 'R' else 1): a(f'v_add_u32 v{vTS+j}, s{sreg}, v{vRS+j}')
    for j in range(4 if kW == 'R' else 1): a(f'v_add_u32 v{vTW+j}, s{sreg}, v{vRW+j}')

def loader(a, name, kS, kW, dKS, dKW, kv=False):
    nd = 9 if kv else 7
    a(f's_mov_b32 s{sFill}, 0\ns_mov_b32 s{sKS}, 0\ns_mov_b32 s{sKW}, 0\ns_mov_b32 s{sC}, 0')
    a(f'{name}_pro:')
    dma_chunk(a, kS, kW, kv)
    a(f's_add_u32 s{sFill}, s{sFill}, {BUF}\ns_add_u32 s{sKS}, s{sKS}, {dKS}\ns_add_u32 s{sKW}, s{sKW}, {dKW}')
    a(f's_add_u32 s{sC}, s{sC}, 1\ns_cmp_lt_u32 s{sC}, 4\ns_cbranch_scc1 {name}_pro')
    a(f's_mov_b32 s{sC}, 0')
    a(f's_waitcnt vmcnt({3*nd})\ns_barrier')
    a(f'{name}_lloop:')
    a(f's_waitcnt vmcnt({2*nd})\ns_barrier')
    dma_chunk(a, kS, kW, kv)
    a(f's_add_u32 s{sFill}, s{sFill}, {BUF}\ns_cmp_ge_u32 s{sFill}, {BUF*NBUF}\ns_cselect_b32 s{sFill}, 0, s{sFill}')
    a(f's_add_u32 s{sKS}, s{sKS}, {dKS}\ns_add_u32 s{sKW}, s{sKW}, {dKW}')
    a(f's_add_u32 s{sC}, s{sC}, 1\ns_cmp_lt_u32 s{sC}, 5\ns_cbranch_scc1 {name}_lloop')
    a(f's_waitcnt vmcnt({2*nd})\ns_barrier\ns_waitcnt vmcnt({nd})\ns_barrier\ns_waitcnt vmcnt(0)\ns_barrier\ns_barrier')

def compute(a, name, kS, kW, kv=False, late=None):
    nt = 2 if kv else 3
    for i in range(16*nt): a(f'v_mov_b32 v{vA+i}, 0')
    a(f's_mov_b32 s{sBuf}, 0\ns_mov_b32 s{sC}, 0')
    set_addrs(a, kS, 'T' if kv else kW, sBuf)
    stamp(a, 1)
    a('s_barrier')
    stamp(a, 2)
    if late: late()
    for j in range(2):
        for x in reads_l(kS, kW, j, j, kv): a(x)
    a(f'{name}_loop:')
    a('s_barrier')
    for j in range(4):
        if j == 2:
            a(f's_add_u32 s{sBuf}, s{sBuf}, {BUF}\ns_cmp_ge_u32 s{sBuf}, {BUF*NBUF}\ns_cselect_b32 s{sBuf}, 0, s{sBuf}')
            set_addrs(a, kS, 'T' if kv else kW, sBuf)
        r = reads_l(kS, kW, (j+2) & 3, (j+2) & 3, kv)
        n = len(r)
        a(f's_waitcnt lgkmcnt({n})')
        f = vF + 16*j
        if kv:
            mf = [f'v_mfma_f32_32x32x16_bf16 v[{vA}:{vA+15}], v[{f+4}:{f+7}], v[{f}:{f+3}], v[{vA}:{vA+15}]',
                  f'v_mfma_f32_32x32x16_bf16 v[{vA+16}:{vA+31}], v[{f}:{f+3}], v[{f+8}:{f+11}], v[{vA+16}:{vA+31}]']
        else:
            mf = [f'v_mfma_f32_32x32x16_bf16 v[{vA+16*tt}:{vA+16*tt+15}], v[{f+4+4*tt}:{f+7+4*tt}], v[{f}:{f+3}], v[{vA+16*tt}:{vA+16*tt+15}]' for tt in range(3)]
        m = len(mf); per = (n + m - 1)//m
        for i in range(m):
            a(mf[i])
            for x in r[i*per:(i+1)*per]: a(x)
    a(f's_add_u32 s{sC}, s{sC}, 1\ns_cmp_lt_u32 s{sC}, 9\ns_cbranch_scc1 {name}_loop')
    a('s_waitcnt lgkmcnt(0)\ns_nop 7\ns_nop 7')
    stamp(a, 3)

def epi_write(a, mode, scale=None):
    t = vT
    if mode == 'row':
        a(f'v_and_b32 v{t}, 31, v0\ns_lshl_b32 s{sT0}, s{sWv}, 5\nv_add_u32 v{t}, s{sT0}, v{t}\nv_mul_u32_u24 v{t}, 208, v{t}\nv_lshrrev_b32 v{t+1}, 5, v0\nv_lshl_add_u32 v{t}, v{t+1}, 3, v{t}')
        if scale is not None: a(f's_mov_b32 s{sT2}, {f32bits(scale)}')
        for tt in range(3):
            for g in range(4):
                d = vA + 16*tt + 4*g; p = t + 2 + 2*((tt*4+g) & 3)
                if scale is not None:
                    for r in range(4): a(f'v_mul_f32 v{d+r}, s{sT2}, v{d+r}')
                a(f'v_cvt_pk_bf16_f32 v{p}, v{d}, v{d+1}\nv_cvt_pk_bf16_f32 v{p+1}, v{d+2}, v{d+3}')
                if tt == 0 and g == 0: a('s_barrier')
                a(f'ds_write_b64 v{t}, v[{p}:{p+1}] offset:{64*tt+16*g}')
    else:
        a(f'v_and_b32 v{t}, 31, v0\ns_lshl_b32 s{sT0}, s{sWv}, 5\nv_add_u32 v{t}, s{sT0}, v{t}\nv_lshlrev_b32 v{t}, 2, v{t}\nv_lshrrev_b32 v{t+1}, 5, v0\nv_mul_u32_u24 v{t+1}, 1152, v{t+1}\nv_add_u32 v{t}, v{t}, v{t+1}')
        for tt in range(3):
            for g in range(4):
                d = vA + 16*tt + 4*g
                for u in range(2):
                    p = t + 2 + ((tt*8+g*2+u) & 7)
                    a(f'v_cvt_pk_bf16_f32 v{p}, v{d+2*u}, v{d+2*u+1}')
                    if tt == 0 and g == 0 and u == 0: a('s_barrier')
                    a(f'ds_write_b32 v{t}, v{p} offset:{(16*tt+4*g+u)*576}')
    a('s_waitcnt lgkmcnt(0)\ns_barrier')

def epi_store(a, mode, soff_s, rowstride):
    t = vT
    a(f's_lshl_b32 s{sT0}, s{sW8}, 6\nv_add_u32 v{t}, s{sT0}, v0')
    for n in range(3):
        r, c, la, ga = t+1, t+2, t+4+n, t+8+n
        a(f'v_add_u32 v{t+3}, {512*n}, v{t}')
        if mode == 'row':
            a(f'v_mul_u32_u24 v{r}, 5462, v{t+3}\nv_lshrrev_b32 v{r}, 16, v{r}\nv_mul_u32_u24 v{c}, 12, v{r}\nv_sub_u32 v{c}, v{t+3}, v{c}')
            ls = 208
        else:
            a(f'v_lshrrev_b32 v{r}, 5, v{t+3}\nv_and_b32 v{c}, 31, v{t+3}')
            ls = 576
        a(f'v_lshlrev_b32 v{c}, 4, v{c}\nv_mad_u32_u24 v{la}, v{r}, s{sT2}, v{c}'.replace(f's{sT2}', f'v{t+11}') if False else
          f'v_lshlrev_b32 v{c}, 4, v{c}\nv_mul_u32_u24 v{la}, {ls}, v{r}\nv_add_u32 v{la}, v{la}, v{c}\nv_mul_u32_u24 v{ga}, {rowstride}, v{r}\nv_add_u32 v{ga}, v{ga}, v{c}')
    return t

def epi_store2(a, soff_s):
    t = vT
    for n in range(3): a(f'ds_read_b128 v[{vF+4*n}:{vF+4*n+3}], v{t+4+n}')
    for n in range(3):
        a(f's_waitcnt lgkmcnt({2-n})\nbuffer_store_dwordx4 v[{vF+4*n}:{vF+4*n+3}], v{t+8+n}, s[{sO}:{sO+3}], s{soff_s} offen')

def prefetch(a, name, kS, kW, strideS):
    t = vT; d = vT + 12
    a(f's_mul_i32 s{sT0}, s{sCol0}, 683\ns_lshr_b32 s{sT0}, s{sT0}, 16\ns_lshr_b32 s{sT1}, s{sRow0}, 7\ns_and_b32 s{sT1}, s{sT1}, 1')
    a(f's_cmp_ge_u32 s{sWv}, 2\ns_cbranch_scc1 {name}_pf1')
    a(f's_lshl_b32 s{sT2}, s{sWv}, 6\nv_add_u32 v{t}, s{sT2}, v0')
    if kS == 'R':
        a(f'v_mul_u32_u24 v{t+1}, 13108, v{t}\nv_lshrrev_b32 v{t+1}, 16, v{t+1}\nv_mul_u32_u24 v{t+2}, 5, v{t+1}\nv_sub_u32 v{t+2}, v{t}, v{t+2}')
        a(f's_mul_i32 s{sT2}, s{sT0}, 22\ns_add_u32 s{sT2}, s{sT2}, s{sRow0}\nv_add_u32 v{t+1}, s{sT2}, v{t+1}\nv_mul_u32_u24 v{t+1}, {strideS}, v{t+1}\nv_lshl_add_u32 v{t+1}, v{t+2}, 7, v{t+1}')
        a(f'buffer_load_dword v{d}, v{t+1}, s[{sS}:{sS+3}], 0 offen offset:512')
    else:
        a(f's_mul_i32 s{sT2}, s{sT0}, 107\nv_add_u32 v{t}, s{sT2}, v{t}\nv_lshrrev_b32 v{t+1}, 1, v{t}\nv_add_u32 v{t+1}, 256, v{t+1}\nv_lshlrev_b32 v{t+1}, 12, v{t+1}\nv_and_b32 v{t+2}, 1, v{t}\nv_lshl_add_u32 v{t+1}, v{t+2}, 7, v{t+1}')
        a(f's_lshl_b32 s{sT2}, s{sRow0}, 1\nbuffer_load_dword v{d}, v{t+1}, s[{sS}:{sS+3}], s{sT2} offen')
    a(f'{name}_pf1:')
    def wline(mexpr_s, dst):
        a(f's_lshl_b32 s{sT2}, s{mexpr_s}, 6\nv_add_u32 v{t}, s{sT2}, v0')
        if kW == 'T':
            a(f's_mul_i32 s{sT2}, s{sT1}, 320\nv_add_u32 v{t}, s{sT2}, v{t}\nv_lshrrev_b32 v{t+1}, 1, v{t}\nv_add_u32 v{t+1}, 256, v{t+1}\nv_mul_u32_u24 v{t+1}, 1152, v{t+1}\nv_and_b32 v{t+2}, 1, v{t}\nv_lshl_add_u32 v{t+1}, v{t+2}, 7, v{t+1}')
            a(f's_lshl_b32 s{sT2}, s{sCol0}, 1\nbuffer_load_dword v{dst}, v{t+1}, s[{sW}:{sW+3}], s{sT2} offen')
        else:
            a(f's_mul_i32 s{sT2}, s{sT1}, 240\nv_add_u32 v{t}, s{sT2}, v{t}\nv_mul_u32_u24 v{t+1}, 13108, v{t}\nv_lshrrev_b32 v{t+1}, 16, v{t+1}\nv_mul_u32_u24 v{t+2}, 5, v{t+1}\nv_sub_u32 v{t+2}, v{t}, v{t+2}')
            a(f'v_add_u32 v{t+1}, s{sCol0}, v{t+1}\nv_mul_u32_u24 v{t+1}, 1152, v{t+1}\nv_lshl_add_u32 v{t+1}, v{t+2}, 7, v{t+1}\nbuffer_load_dword v{dst}, v{t+1}, s[{sW}:{sW+3}], 0 offen offset:512')
    wline(sWv, d+1)
    if kW == 'T':
        a(f's_cmp_lg_u32 s{sWv}, 2\ns_cbranch_scc1 {name}_pf2\ns_mov_b32 s34, 4')
        wline(34, d+2)
        a(f'{name}_pf2:')

def gemm_task(a, name, kS, kW, dKS, dKW, setup, mode, soff_s, rowstride, scale=None):
    a(f's_cmp_ge_u32 s{sW8}, 4\ns_cbranch_scc1 {name}_ld')
    pf = PF and name[:2] not in os.environ.get('NOPFK', 'K3')
    lt = os.environ.get('PFLATE')
    if pf and not lt: prefetch(a, name, kS, kW, 1152)
    setup('rd')
    compute(a, name, kS, kW, late=(lambda: prefetch(a, name, kS, kW, 1152)) if (pf and lt) else None)
    if pf: a('s_waitcnt vmcnt(0)')
    epi_write(a, mode, scale)
    a(f's_branch {name}_st')
    a(f'{name}_ld:')
    setup('dma')
    loader(a, name, kS, kW, dKS, dKW)
    epi_store(a, mode, soff_s, rowstride)
    a('s_barrier\ns_barrier')
    a(f's_branch {name}_st2')
    a(f'{name}_st:')
    epi_store(a, mode, soff_s, rowstride)
    a(f'{name}_st2:')
    epi_store2(a, soff_s)
    if STAMP:
        a('s_waitcnt vmcnt(0)'); stamp(a, 4); stamp_flush(a, 5, 90, VST)
    a('s_endpgm')

def epi_rowmajor(a, col_byte0_s, scale=None, rowstride=1152):
    t = vT
    a(f'v_and_b32 v{t}, 31, v0\ns_lshl_b32 s{sT0}, s{sWv}, 5\ns_add_u32 s{sT0}, s{sT0}, s{sRow0}\nv_add_u32 v{t}, s{sT0}, v{t}')
    a(f's_movk_i32 s{sT1}, {rowstride}\nv_mul_lo_u32 v{t}, v{t}, s{sT1}\nv_lshrrev_b32 v{t+1}, 5, v0\nv_lshl_add_u32 v{t}, v{t+1}, 3, v{t}')
    if scale is not None: a(f's_mov_b32 s{sT2}, {f32bits(scale)}')
    for tt in range(3):
        for g in range(4):
            d = vA + 16*tt + 4*g; p = t + 2 + 2*((tt*4+g) & 3)
            if scale is not None:
                for r in range(4): a(f'v_mul_f32 v{d+r}, s{sT2}, v{d+r}')
            a(f'v_cvt_pk_bf16_f32 v{p}, v{d}, v{d+1}\nv_cvt_pk_bf16_f32 v{p+1}, v{d+2}, v{d+3}')
            a(f'buffer_store_dwordx2 v[{p}:{p+1}], v{t}, s[{sO}:{sO+3}], s{col_byte0_s} offen offset:{64*tt+16*g}')
```

```python
from common import *
import numpy as np
CH = 20480; LDS_X = 3*CH; LDS = LDS_X + 8192
NV = 168
sWv = 3
def _bf(x): return bf16(float(x))
def tab_F1():
    out = []
    for w in range(2):
        for j in range(4):
            for l in range(64):
                i, kh = l & 31, l >> 5
                c = 16*w + (i >> 1); ro = i & 1
                for jj in range(8):
                    a = 8*j + 4*kh + (jj >> 1); ri = jj & 1
                    th = 2*math.pi*a*c/32
                    v = (math.cos(th) if ri == ro else (math.sin(th) if ri == 1 else -math.sin(th)))
                    out.append(_bf(v))
    return np.array(out, np.uint16).tobytes()
def tab_CS():
    out = []
    for dt in range(2):
        for st in range(4):
            for cs in range(2):
                for l in range(64):
                    i, kh = l & 31, l >> 5
                    d = 32*dt + i
                    for jj in range(8):
                        b = 16*st + 8*(jj >> 2) + 4*kh + (jj & 3)
                        th = 2*math.pi*b*d/64
                        out.append(_bf(math.cos(th) if cs == 0 else math.sin(th)))
    return np.array(out, np.uint16).tobytes()
def tab_TW1():
    out = []
    for w in range(2):
        for mt in range(2):
            for R2 in range(8):
                for l in range(64):
                    i, h = l & 31, l >> 5
                    c = 16*w + (i >> 1)
                    for R in (2*R2, 2*R2+1):
                        g, r = R >> 2, R & 3
                        b = 32*mt + 8*g + 4*h + r
                        ph = 2*math.pi*b*c/2048
                        out += [math.cos(ph), math.sin(ph) if (i & 1) == 0 else -math.sin(ph)]
    return np.array(out, np.float32).tobytes()
def tab_TW2():
    out = []
    for w in range(2):
        for bt in range(2):
            for g in range(4):
                for l in range(64):
                    i, h = l & 31, l >> 5
                    b = 32*bt + i
                    for P in range(2):
                        c = 16*w + 4*g + 2*h + P
                        ph = 2*math.pi*b*c/2048
                        out += [math.cos(ph), math.sin(ph)]
    return np.array(out, np.float32).tobytes()
def tab_F4():
    out = []
    for nt in range(2):
        for st in range(4):
            w2, u = st >> 1, st & 1
            for l in range(64):
                i, kh = l & 31, l >> 5
                a = 16*nt + (i >> 1); ro = i & 1
                for jj in range(8):
                    q = jj >> 1; ri = jj & 1
                    c = 16*w2 + 4*(2*u + (q >> 1)) + 2*kh + (q & 1)
                    th = 2*math.pi*a*c/32
                    v = (math.cos(th) if ri == ro else (-math.sin(th) if ri == 1 else math.sin(th)))
                    out.append(_bf(v))
    return np.array(out, np.uint16).tobytes()
OF1, OCS, OTW1, OTW2, OF4 = 0, 8192, 8192+16384, 8192+16384+32768, 8192+16384+32768+16384
def tables():
    b = tab_F1() + tab_CS() + tab_TW1() + tab_TW2() + tab_F4()
    assert len(b) == OF4 + 8192
    return data_text('FTAB', b)
DPP = 'quad_perm:[1,0,3,2] row_mask:0xf bank_mask:0xf'

FUSE = False
FINE = os.environ.get('FINE', '1') == '1'
def fft_wave(a):
    XA, F1, D, TW, PB, PS, CS, WA, WB, T = 8, 40, 56, 88, 8, 24, 88, 40, 152, 2
    def wreg(k): return (WA + 2*k) if k < 8 else (WB + 2*(k-8))
    a(f's_sub_u32 s4, s{sWv}, 8\ns_and_b32 s5, s4, 1\ns_lshr_b32 s4, s4, 1\ns_lshl_b32 s6, s2, 1\ns_add_u32 s6, s6, s4')
    a('s_cmp_ge_u32 s6, 289\ns_cbranch_scc1 K2_end')
    if os.environ.get('NOFFT'): a('s_branch K2_end')
    a('s_setprio %s' % os.environ.get('FFTPRIO', '0' if FINE else '3'))
    pc_addr(a, 24, 'FTAB', 'K2_pc1')
    a('s_waitcnt lgkmcnt(0)')
    srd(a, 8, 40, 288*8192, WS_XC); srd(a, 12, 40, 289*16384, WS_WT); srd(a, 16, 40, 576*4096, WS_ZC); srd(a, 20, 24, OF4+8192)
    a('s_cmp_eq_u32 s6, 288\ns_cselect_b32 s7, 0, s6\ns_lshl_b32 s28, s7, 13\ns_add_u32 s29, s28, 4096')
    a('v_and_b32 v1, 31, v0\nv_lshrrev_b32 v6, 5, v0\nv_lshlrev_b32 v7, 2, v1\nv_lshl_add_u32 v7, v6, 10, v7')
    for mt in range(2):
        for j in range(4):
            for q in range(4):
                off = 2048*j + 256*q + 128*mt
                a(f'buffer_load_dword v{XA+16*mt+4*j+q}, v7, s[8:11], s{28 if off < 4096 else 29} offen offset:{off & 4095}')
    a('v_lshlrev_b32 v160+0, 4, v0'.replace('v160+0', 'v168') if False else '')
    a('s_barrier')
    a('v_lshlrev_b32 v5, 4, v0')
    def tload(dst, off_expr_s, imm):
        a(f'buffer_load_dwordx4 v[{dst}:{dst+3}], v5, s[20:23], s{off_expr_s} offen offset:{imm}')
    a(f's_lshl_b32 s30, s5, 12\ns_add_u32 s30, s30, {OF1}')
    for j in range(4): tload(F1+4*j, 30, 1024*j)
    for mt in range(2):
        for half in range(2):
            a(f's_mul_i32 s30, s5, 16384\ns_add_u32 s30, s30, {OTW1 + 8192*mt + 4096*half}')
            for k in range(4): tload(TW + 32*mt + 16*half + 4*k, 30, 1024*k)
    a('v_and_b32 v2, 1, v0\nv_cmp_eq_u32 vcc, 1, v2\nv_mov_b32 v3, 0x80008000\nv_mov_b32 v4, 0')
    a('s_nop 0\nv_cndmask_b32 v6, v4, v3, vcc\nv_cndmask_b32 v7, v3, v4, vcc')
    a('v_mov_b32 v2, -1.0\nv_mov_b32 v3, 1.0\nv_cndmask_b32 v1, v2, v3, vcc')
    stamp(a, 1, 92)
    a('s_waitcnt vmcnt(20)')
    a('s_cmp_eq_u32 s6, 0\ns_cbranch_scc1 K2f_sp0\ns_cmp_eq_u32 s6, 288\ns_cbranch_scc0 K2f_nosp')
    for k in range(32): a(f'v_lshrrev_b32 v{XA+k}, 16, v{XA+k}')
    a('s_branch K2f_nosp\nK2f_sp0:')
    for k in range(32): a(f'v_and_b32 v{XA+k}, 0xffff, v{XA+k}')
    a('K2f_nosp:')
    a('s_waitcnt vmcnt(16)\ns_nop 1')
    for mt in range(2):
        for j in range(4):
            c = '0' if j == 0 else f'v[{D+16*mt}:{D+16*mt+15}]'
            a(f'v_mfma_f32_32x32x16_bf16 v[{D+16*mt}:{D+16*mt+15}], v[{XA+16*mt+4*j}:{XA+16*mt+4*j+3}], v[{F1+4*j}:{F1+4*j+3}], {c}')
    a('s_barrier')
    a('s_waitcnt vmcnt(0)\ns_nop 7\ns_nop 3')
    def cmul_lane(dreg, creg, sreg, tdst):
        a(f'v_mul_f32 v{tdst}, v{dreg}, v{creg}\nv_fmac_f32_dpp v{tdst}, v{dreg}, v{sreg} {DPP}')
    for mt in range(2):
        if mt == 1 and FINE: a('s_barrier')
        for R2 in range(8):
            tw = TW + 32*mt + 4*R2; d = D + 16*mt + 2*R2
            cmul_lane(d, tw, tw+1, T); cmul_lane(d+1, tw+2, tw+3, T+1)
            a(f'v_cvt_pk_bf16_f32 v{PB+8*mt+R2}, v{T}, v{T+1}')
    a('s_nop 1')
    for k in range(16): a(f'v_xor_b32_dpp v{PS+k}, v{PB+k}, v6 {DPP}')
    for dt in range(2):
        for half in range(2):
            a(f's_mov_b32 s30, {OCS + 8192*dt + 4096*half}')
            for k in range(4): tload(CS + 32*dt + 16*half + 4*k, 30, 1024*k)
    a('v_and_b32 v2, 31, v0\nv_lshrrev_b32 v2, 1, v2\ns_lshl_b32 s30, s5, 4\nv_add_u32 v2, s30, v2\nv_lshlrev_b32 v2, 3, v2\nv_lshrrev_b32 v3, 5, v0\nv_lshl_add_u32 v4, v3, 10, v2')
    def wload(dt):
        for g in range(4):
            a(f's_lshl_b32 s30, s6, 14\ns_add_u32 s30, s30, {8192*dt + 2048*g}')
            for r in range(4):
                k = 4*g + r
                a(f'buffer_load_dwordx2 v[{wreg(k)}:{wreg(k)+1}], v4, s[12:15], s30 offen offset:{256*r}')
    wload(0)
    stamp(a, 2, 92)
    a('s_barrier')
    a('s_waitcnt vmcnt(16)')
    for dt in range(2):
        first = True
        for st in range(4):
            for cs in range(2):
                src = (PB if cs == 0 else PS) + 4*st
                c = '0' if first else f'v[{D+16*dt}:{D+16*dt+15}]'; first = False
                f = CS + 32*dt + 8*st + 4*cs
                a(f'v_mfma_f32_32x32x16_bf16 v[{D+16*dt}:{D+16*dt+15}], v[{f}:{f+3}], v[{src}:{src+3}], {c}')
    if FINE: a('s_barrier')
    a('s_waitcnt vmcnt(0)\ns_nop 7\ns_nop 3')
    def wmul(dt):
        for k in range(0, 16, 2):
            for e in range(2):
                wr = wreg(k+e); d = D + 16*dt + k + e
                a(f'v_mul_f32 v{wr+1}, v{wr+1}, v1')
                cmul_lane(d, wr, wr+1, T+e)
            a(f'v_cvt_pk_bf16_f32 v{PB+8*dt+(k>>1)}, v{T}, v{T+1}')
    wmul(0)
    wload(1)
    a('s_barrier')
    a('s_waitcnt vmcnt(0)')
    wmul(1)
    a('s_nop 1')
    for k in range(16): a(f'v_xor_b32_dpp v{PS+k}, v{PB+k}, v7 {DPP}')
    def t2reg(bt, g): return (WA if bt == 0 else WB) + 4*g
    for bt in range(2):
        a(f's_lshl_b32 s30, s5, 13\ns_add_u32 s30, s30, {OTW2 + 4096*bt}')
        for g in range(4): tload(t2reg(bt, g), 30, 1024*g)
    for bt in range(2):
        first = True
        for st in range(4):
            for cs in range(2):
                src = (PB if cs == 0 else PS) + 4*st
                c = '0' if first else f'v[{D+16*bt}:{D+16*bt+15}]'; first = False
                f = CS + 32*bt + 8*st + 4*cs
                a(f'v_mfma_f32_32x32x16_bf16 v[{D+16*bt}:{D+16*bt+15}], v[{src}:{src+3}], v[{f}:{f+3}], {c}')
    a('s_barrier')
    for nt in range(2):
        a(f's_mov_b32 s30, {OF4 + 4096*nt}')
        for st in range(4): tload(CS + 16*nt + 4*st, 30, 1024*st)
    a('s_waitcnt vmcnt(8)\ns_nop 7')
    E = 8
    for bt in range(2):
        for g in range(4):
            for P in range(2):
                d = D + 16*bt + 4*g + 2*P; tw = t2reg(bt, g) + 2*P
                a(f'v_mul_f32 v{T}, v{d}, v{tw}\nv_mul_f32 v{T+1}, v{d+1}, v{tw}')
                a(f'v_fma_f32 v{T}, -v{d+1}, v{tw+1}, v{T}\nv_fma_f32 v{T+1}, v{d}, v{tw+1}, v{T+1}')
                a(f'v_cvt_pk_bf16_f32 v{E+8*bt+2*g+P}, v{T}, v{T+1}')
    a(f's_sub_u32 s30, s{sWv}, 8\ns_lshl_b32 s30, s30, 11\ns_add_u32 s30, s30, {LDS_X}\nv_add_u32 v2, s30, v5')
    a('s_cmp_eq_u32 s5, 0\ns_cbranch_scc1 K2f_w0')
    a('ds_write_b128 v2, v[8:11]\nds_write_b128 v2, v[12:15] offset:1024')
    for k in range(8): a(f'v_mov_b32 v{32+k}, v{16+k}')
    a('s_branch K2f_wj\nK2f_w0:')
    a('ds_write_b128 v2, v[16:19]\nds_write_b128 v2, v[20:23] offset:1024')
    for k in range(8): a(f'v_mov_b32 v{24+k}, v{8+k}')
    a('K2f_wj:')
    stamp(a, 3, 92)
    a('s_waitcnt lgkmcnt(0)\ns_barrier')
    a('v_xor_b32 v2, 2048, v2')
    a('s_cmp_eq_u32 s5, 0\ns_cbranch_scc1 K2f_r0')
    a('ds_read_b128 v[24:27], v2\nds_read_b128 v[28:31], v2 offset:1024\ns_branch K2f_rj\nK2f_r0:')
    a('ds_read_b128 v[32:35], v2\nds_read_b128 v[36:39], v2 offset:1024\nK2f_rj:')
    a('s_waitcnt vmcnt(0) lgkmcnt(0)')
    for nt in range(2):
        for st in range(4):
            c = '0' if st == 0 else f'v[{D+16*nt}:{D+16*nt+15}]'
            f = CS + 16*nt + 4*st
            a(f'v_mfma_f32_32x32x16_bf16 v[{D+16*nt}:{D+16*nt+15}], v[{24+4*st}:{24+4*st+3}], v[{f}:{f+3}], {c}')
    a('v_and_b32 v2, 31, v0\nv_lshrrev_b32 v3, 1, v2\nv_lshlrev_b32 v3, 7, v3\nv_lshrrev_b32 v4, 5, v0\nv_lshl_add_u32 v3, v4, 3, v3\nv_and_b32 v2, 1, v2')
    a('s_lshl_b32 s31, s5, 6\ns_add_u32 s31, s31, s28')
    a('s_cmp_eq_u32 s6, 0\ns_cbranch_scc1 K2f_st0\ns_cmp_eq_u32 s6, 288\ns_cbranch_scc1 K2f_st288')
    a('v_lshl_add_u32 v3, v2, 12, v3\ns_branch K2f_stj')
    a('K2f_st288:\nv_add_u32 v3, 4096, v3\nK2f_st0:\nv_cmp_eq_u32 vcc, 0, v2\ns_nop 1\ns_and_b64 exec, exec, vcc')
    a('K2f_stj:\ns_nop 7')
    for nt in range(2):
        for g in range(4):
            d = D + 16*nt + 4*g; p = 8 + 2*(4*nt+g)
            a(f'v_cvt_pk_bf16_f32 v{p}, v{d}, v{d+1}\nv_cvt_pk_bf16_f32 v{p+1}, v{d+2}, v{d+3}')
            a(f'buffer_store_dwordx2 v[{p}:{p+1}], v3, s[16:19], s31 offen offset:{2048*nt + 16*g}' + (' sc1' if FUSE else ''))
    if STAMP:
        a('s_mov_b64 exec, -1\ns_waitcnt vmcnt(0)\ns_lshl_b32 s26, s3, 6\nv_add_u32 v123, s26, v0'); stamp(a, 4, 92); stamp_flush(a, 5, 92)
    if FUSE: a('s_waitcnt vmcnt(0)')
    a('s_endpgm')

def attn_wave(a):
    Q1, Q2, S, P, O = 2, 6, [8, 24], 40, 48
    Kf, Vf = [64, 72], [80, 88]
    aK1, aK2, aV = [96, 99], [97, 100], [98, 101]
    T = 104
    if os.environ.get('NOXQ'): a(f's_lshr_b32 s4, s2, 2\ns_and_b32 s5, s2, 3\ns_lshl_b32 s5, s5, 3\ns_add_u32 s5, s5, s{sWv}')
    else:
        a(f's_and_b32 s4, s2, 7\ns_lshl_b32 s4, s4, 3\ns_lshr_b32 s5, s2, 5\ns_add_u32 s4, s4, s5\ns_lshr_b32 s5, s2, 3\ns_and_b32 s5, s5, 3\ns_lshl_b32 s5, s5, 3\ns_add_u32 s5, s5, s{sWv}')
    a('s_waitcnt lgkmcnt(0)')
    srd(a, 8, 40, NB_ACT, WS_Q); srd(a, 12, 40, 64*KVT, WS_KV); srd(a, 16, 40, NB_ACT, WS_O)
    srd(a, 28, 40, 256, WS_KMX)
    a('v_lshlrev_b32 v102, 4, v0\nv_lshlrev_b32 v116, 2, v0\nbuffer_load_dword v117, v116, s[28:31], 0 offen')
    a(f's_mul_i32 s20, s{sWv}, {KVT}')
    def dmap(n, g_s, l_s):
        if n == 2: a('s_mov_b32 exec_hi, 0')
        a(f's_add_u32 m0, s{l_s}, {1024*n}\ns_add_u32 s27, s{g_s}, {1024*n}\nbuffer_load_dwordx4 v102, s[12:15], s27 offen lds')
        if n == 2: a('s_mov_b32 exec_hi, -1')
    a(f'v_and_b32 v1, 31, v0\ns_lshl_b32 s6, s4, 5\nv_add_u32 v{T}, s6, v1\ns_movk_i32 s7, 1152\nv_mul_lo_u32 v{T}, v{T}, s7')
    a(f'v_lshrrev_b32 v{T+1}, 5, v0\nv_lshl_add_u32 v103, v{T+1}, 3, v{T}\ns_mul_i32 s7, s5, 36')
    a(f'buffer_load_dwordx2 v[{Q1}:{Q1+1}], v103, s[8:11], s7 offen\nbuffer_load_dwordx2 v[{Q1+2}:{Q1+3}], v103, s[8:11], s7 offen offset:16')
    a(f'buffer_load_dword v{Q2}, v{T}, s[8:11], s7 offen offset:32')
    a('s_mov_b32 s22, s20\ns_mov_b32 s23, s20')
    for n in range(3): dmap(n, 22, 23)
    a(f's_add_u32 s22, s20, {CH}\ns_add_u32 s23, s20, {CH}')
    for n in range(2): dmap(n, 22, 23)
    a(f'v_lshlrev_b32 v{aK1[0]}, 4, v0\nv_lshlrev_b32 v{aK2[0]}, 3, v1\nv_add_u32 v{aK2[0]}, 1024, v{aK2[0]}')
    a(f'v_mov_b32 v{T+2}, 19\nv_cmp_gt_u32 vcc, 19, v1\ns_nop 1\nv_cndmask_b32 v{T+2}, v{T+2}, v1, vcc')
    if False: a(f'v_subrev_u32 v{T+3}, 20, v1\nv_cmp_gt_u32 vcc, 8, v{T+3}\ns_nop 1\nv_cndmask_b32 v{T+2}, v{T+2}, 0, vcc'.replace(f'v_cndmask_b32 v{T+2}, v{T+2}, 0, vcc', f'v_mov_b32 v{T+3}, 0\nv_cndmask_b32 v{T+2}, v{T+2}, v{T+3}, vcc'))
    a(f'v_mul_u32_u24 v{T+3}, 20, v{T+1}\nv_add_u32 v{T+2}, v{T+2}, v{T+3}\nv_lshlrev_b32 v{T+2}, 4, v{T+2}\nv_add_u32 v{aV[0]}, 1280, v{T+2}')
    for r in (aK1, aK2, aV): a(f'v_add_u32 v{r[1]}, {CH}, v{r[0]}')
    for i in range(16): a(f'v_mov_b32 v{O+i}, 0')
    a('s_waitcnt vmcnt(2)')
    for ctl in ('row_shr:1', 'row_shr:2', 'row_shr:4', 'row_shr:8', 'row_bcast:15 row_mask:0xa', 'row_bcast:31 row_mask:0xc'):
        rm = '' if 'row_mask' in ctl else ' row_mask:0xf'
        a(f's_nop 1\nv_max_u32_dpp v117, v117, v117 {ctl}{rm} bank_mask:0xf')
    a('s_nop 1\nv_readlane_b32 s44, v117, 63')
    a(f'v_cmp_gt_u32 vcc, 32, v0\nv_mov_b32 v{T}, 0\ns_nop 0\nv_cndmask_b32 v{Q2}, v{T}, v{Q2}, vcc')
    a(f'v_dot2_f32_bf16 v{T}, v{Q1}, v{Q1}, v{T}')
    for r in (Q1+1, Q1+2, Q1+3, Q2): a(f's_nop 2\nv_dot2_f32_bf16 v{T}, v{r}, v{r}, v{T}')
    a(f's_nop 2\nv_mov_b32 v{T+1}, v{T}\ns_nop 1\nv_permlane32_swap_b32 v{T}, v{T+1}\nv_add_f32 v{T}, v{T}, v{T+1}')
    a(f'v_mul_f32 v{T}, s44, v{T}\nv_sqrt_f32 v{T}, v{T}\ns_nop 0\nv_mul_f32 v{T}, {f32bits(-(1+2**-6)):#x}, v{T}')
    a(f'v_mov_b32 v{T+1}, 0\nv_cvt_pk_bf16_f32 v{T}, v{T}, v{T+1}\nv_cndmask_b32 v{Q2+1}, v{T+1}, v{T}, vcc')
    stamp(a, 1, 92)
    a('s_barrier')
    stamp(a, 2, 92)
    def rdK(buf, areg, u):
        a(f'ds_read_b128 v[{Kf[buf]}:{Kf[buf]+3}], v{aK1[areg]} offset:{u*KVT}\nds_read_b64 v[{Kf[buf]+4}:{Kf[buf]+5}], v{aK2[areg]} offset:{u*KVT}')
    def rdV(buf, areg, u):
        a(f'ds_read_b128 v[{Vf[buf]}:{Vf[buf]+3}], v{aV[areg]} offset:{u*KVT}\nds_read_b128 v[{Vf[buf]+4}:{Vf[buf]+7}], v{aV[areg]} offset:{u*KVT+640}')
    def qk1(sb, kb): a(f'v_mfma_f32_32x32x16_bf16 v[{S[sb]}:{S[sb]+15}], v[{Kf[kb]}:{Kf[kb]+3}], v[{Q1}:{Q1+3}], 0')
    def qk2(sb, kb): a(f'v_mfma_f32_32x32x8bf16_1k v[{S[sb]}:{S[sb]+15}], v[{Kf[kb]+4}:{Kf[kb]+5}], v[{Q2}:{Q2+1}], v[{S[sb]}:{S[sb]+15}]')
    def rdK1(buf, areg, u): a(f'ds_read_b128 v[{Kf[buf]}:{Kf[buf]+3}], v{aK1[areg]} offset:{u*KVT}')
    def rdK2(buf, areg, u): a(f'ds_read_b64 v[{Kf[buf]+4}:{Kf[buf]+5}], v{aK2[areg]} offset:{u*KVT}')
    def rdV1(buf, areg, u): a(f'ds_read_b128 v[{Vf[buf]}:{Vf[buf]+3}], v{aV[areg]} offset:{u*KVT}')
    def rdV2(buf, areg, u): a(f'ds_read_b128 v[{Vf[buf]+4}:{Vf[buf]+7}], v{aV[areg]} offset:{u*KVT+640}')
    def pv(h, vb): a(f'v_mfma_f32_32x32x16_bf16 v[{O}:{O+15}], v[{Vf[vb]+4*h}:{Vf[vb]+4*h+3}], v[{P+4*h}:{P+4*h+3}], v[{O}:{O+15}]')
    rdK(0, 0, 0); rdK(1, 0, 1); rdV(0, 0, 0)
    for i in range(4): a(f'v_mov_b32 v{P+4+i}, 0\nv_mov_b32 v{Vf[1]+4+i}, 0')
    a('s_waitcnt lgkmcnt(4)'); qk1(0, 0); qk2(0, 0)
    a(f's_mov_b32 s24, 0\ns_mov_b32 s25, {2*CH}')
    a('s_nop 7\ns_nop 3')
    a('.p2align 6\nK2a_loop:')
    for u in range(8):
        b = u & 1; s = S[b]
        ex = lambda lo, hi: [a(f'{"v_mov_b32" if os.environ.get("NOEXP") else "v_exp_f32"} v{s+i}, v{s+i}') for i in range(lo, hi)]
        cv = lambda lo, hi: [a(f'v_cvt_pk_bf16_f32 v{P+i}, v{s+2*i}, v{s+2*i+1}') for i in range(lo, hi)]
        ka, ku = (0, u+2) if u + 2 < 8 else (1, u+2-8)
        va, vu = (0, u+1) if u + 1 < 8 else (1, 0)
        if u == 6:
            a('s_waitcnt vmcnt(0) lgkmcnt(0)\ns_barrier')
            a(f's_add_u32 s22, s22, {CH}\ns_add_u32 s23, s20, s25')
        else: a('s_waitcnt lgkmcnt(0)')
        qk1(1-b, 1-b)
        rdK1(b, ka, ku)
        if u in (6, 7, 0): dmap({6: 0, 7: 1, 0: 2}[u], 22, 23)
        ex(0, 5)
        pv(1, 1-b)
        rdK2(b, ka, ku)
        ex(5, 8); cv(0, 4)
        qk2(1-b, 1-b)
        rdV1(1-b, va, vu)
        ex(8, 12)
        pv(0, b)
        rdV2(1-b, va, vu)
        ex(12, 16); cv(4, 8)
    for r in (aK1, aK2, aV): a(f'v_mov_b32 v{r[0]}, v{r[1]}')
    for r, k in ((aK1, 0), (aK2, 1), (aV, 2)): a(f'v_add_u32 v{r[1]}, s25, v{T+8+k}')
    a(f's_add_u32 s25, s25, {CH}\ns_cmp_ge_u32 s25, {3*CH}\ns_cselect_b32 s25, 0, s25')
    a('s_add_u32 s24, s24, 1\ns_cmp_lt_u32 s24, 8\ns_cbranch_scc1 K2a_loop')
    a('s_nop 1'); pv(1, 1)
    a('s_waitcnt vmcnt(0) lgkmcnt(0)\ns_nop 7\ns_nop 7')
    stamp(a, 3, 92)
    a(f'v_mov_b32 v{T}, v{O+10}\nv_mov_b32 v{T+1}, v{O+10}\ns_nop 1\nv_permlane32_swap_b32 v{T}, v{T+1}')
    a(f's_mov_b32 s26, {f32bits(2.0**-80)}\nv_cmp_nle_f32 vcc, s26, v{T}\ns_nop 1\ns_nop 3\ns_cbranch_vccnz K2a_slow')
    a('K2a_fin:')
    a(f'v_rcp_f32 v{T}, v{T}\ns_nop 0')
    for i in range(10): a(f'v_mul_f32 v{O+i}, v{O+i}, v{T}')
    for i in range(5): a(f'v_cvt_pk_bf16_f32 v{P+i}, v{O+2*i}, v{O+2*i+1}')
    sc = ' sc1' if FUSE else ''
    a(f'buffer_store_dwordx2 v[{P}:{P+1}], v103, s[16:19], s7 offen{sc}\nbuffer_store_dwordx2 v[{P+2}:{P+3}], v103, s[16:19], s7 offen offset:16{sc}')
    a(f'v_cmp_gt_u32 vcc, 32, v0\ns_nop 1\ns_and_b64 exec, exec, vcc\nbuffer_store_dword v{P+4}, v103, s[16:19], s7 offen offset:32{sc}')
    if STAMP and not FUSE:
        a('s_mov_b64 exec, -1\ns_waitcnt vmcnt(0)'); stamp(a, 4, 92); stamp_flush(a, 5, 92)
    if FUSE: a('s_mov_b64 exec, -1\ns_branch K23_tail')
    else: a('s_endpgm')
    a('K2a_slow:')
    a(f'v_lshlrev_b32 v{T+4}, 4, v0\nv_lshlrev_b32 v{T+5}, 3, v1\nv_add_u32 v{T+5}, 1024, v{T+5}\nv_mov_b32 v{T+6}, v{T+10}')
    a(f'v_and_b32 v{Q2+1}, 0, v{Q2+1}\nv_mov_b32 v{T+7}, 0xff7fffff\ns_mov_b32 s26, 0')
    a('K2a_s1:')
    a(f'buffer_load_dwordx4 v[{Kf[0]}:{Kf[0]+3}], v{T+4}, s[12:15], s26 offen\nbuffer_load_dwordx2 v[{Kf[0]+4}:{Kf[0]+5}], v{T+5}, s[12:15], s26 offen\ns_waitcnt vmcnt(0)')
    qk1(0, 0); qk2(0, 0); a('s_nop 7\ns_nop 7')
    for i in range(16): a(f'v_max_f32 v{T+7}, v{T+7}, v{S[0]+i}')
    a(f's_add_u32 s26, s26, {KVT}\ns_cmp_lt_u32 s26, {64*KVT}\ns_cbranch_scc1 K2a_s1')
    a(f'v_mov_b32 v{T}, v{T+7}\ns_nop 1\nv_permlane32_swap_b32 v{T}, v{T+7}\nv_max_f32 v{T+7}, v{T+7}, v{T}')
    for i in range(16): a(f'v_mov_b32 v{O+i}, 0')
    a('s_mov_b32 s26, 0\nK2a_s2:')
    a(f'buffer_load_dwordx4 v[{Kf[0]}:{Kf[0]+3}], v{T+4}, s[12:15], s26 offen\nbuffer_load_dwordx2 v[{Kf[0]+4}:{Kf[0]+5}], v{T+5}, s[12:15], s26 offen')
    a(f'buffer_load_dwordx4 v[{Vf[0]}:{Vf[0]+3}], v{T+6}, s[12:15], s26 offen\nbuffer_load_dwordx4 v[{Vf[0]+4}:{Vf[0]+7}], v{T+6}, s[12:15], s26 offen offset:640\ns_waitcnt vmcnt(0)')
    qk1(0, 0); qk2(0, 0); a('s_nop 7\ns_nop 7')
    for i in range(16): a(f'v_sub_f32 v{S[0]+i}, v{S[0]+i}, v{T+7}\nv_exp_f32 v{S[0]+i}, v{S[0]+i}')
    a('s_nop 0')
    for i in range(8): a(f'v_cvt_pk_bf16_f32 v{P+i}, v{S[0]+2*i}, v{S[0]+2*i+1}')
    a('s_nop 1')
    a(f'v_mfma_f32_32x32x16_bf16 v[{O}:{O+15}], v[{Vf[0]}:{Vf[0]+3}], v[{P}:{P+3}], v[{O}:{O+15}]')
    a(f'v_mfma_f32_32x32x16_bf16 v[{O}:{O+15}], v[{Vf[0]+4}:{Vf[0]+7}], v[{P+4}:{P+7}], v[{O}:{O+15}]')
    a(f's_add_u32 s26, s26, {KVT}\ns_cmp_lt_u32 s26, {64*KVT}\ns_cbranch_scc1 K2a_s2')
    a('s_nop 7\ns_nop 7')
    a(f'v_mov_b32 v{T}, v{O+10}\nv_mov_b32 v{T+1}, v{O+10}\ns_nop 1\nv_permlane32_swap_b32 v{T}, v{T+1}\ns_branch K2a_fin')

def k2(a):
    a('K2_base:')
    a('s_cmp_ge_u32 s2, 256\ns_cbranch_scc1 K2_end')
    a('s_load_dwordx2 s[40:41], s[0:1], 80')
    a(f'v_lshrrev_b32 v1, 6, v0\ns_nop 0\nv_readfirstlane_b32 s{sWv}, v1\nv_and_b32 v0, 63, v0\ns_nop 2')
    if STAMP: a('v_lshl_add_u32 v123, v1, 6, v0')
    stamp(a, 0, 92)
    a(f's_cmp_ge_u32 s{sWv}, 8\ns_cbranch_scc1 K2_fft')
    b = Asm(); attn_wave(b)
    txt = b.text().replace("    v_mov_b32 v48, 0\n", "    v_mov_b32 v112, v96\n    v_mov_b32 v113, v97\n    v_mov_b32 v114, v98\n    v_mov_b32 v48, 0\n", 1)
    a.l.append(txt.rstrip('\n'))
    a('K2_fft:')
    fft_wave(a)
    a('K2_end:\ns_endpgm')
    if FUSE:
        import k3
        a('K23_tail:')
        ST5[0] = True
        if STAMP: a('s_lshl_b32 s26, s3, 6\nv_add_u32 v123, s26, v0')
        stamp(a, 0)
        a('s_load_dwordx2 s[42:43], s[0:1], 72')
        a('s_waitcnt vmcnt(0)\ns_barrier')
        stamp(a, 5)
        a('s_waitcnt lgkmcnt(0)')
        srd(a, 28, 42, 256)
        a(f's_cmp_lg_u32 s{sWv}, 0\ns_cbranch_scc1 K23_np')
        a('v_mov_b32 v2, 1\nv_mov_b32 v3, s2\ns_mov_b32 exec_hi, 0\ns_mov_b32 exec_lo, 1\nbuffer_store_byte v2, v3, s[28:31], 0 offen sc1\ns_mov_b64 exec, -1')
        a('s_cmp_ge_u32 s2, 192\ns_cbranch_scc1 K23_np')
        a('v_lshlrev_b32 v3, 2, v0\ns_mov_b32 s26, 0')
        a('K23_poll:\nbuffer_load_dword v2, v3, s[28:31], 0 offen sc1\ns_add_u32 s26, s26, 1\ns_waitcnt vmcnt(0)')
        a('v_cmp_ne_u32 vcc, 0x01010101, v2\ns_cmp_ge_u32 s26, 0x8000\ns_cbranch_scc1 K23_got\ns_nop 1\ns_cbranch_vccnz K23_poll')
        a('K23_got:')
        stamp(a, 6)
        a('buffer_inv sc1\ns_waitcnt vmcnt(0)')
        stamp(a, 7)
        a('K23_np:\ns_cmp_ge_u32 s2, 192\ns_cbranch_scc1 K2_end2')
        a('s_barrier')
        k3.k3(a, fused=True)
        a('K2_end2:\ns_endpgm')
```

```python
from common import *
import numpy as np
CH = 20480; LDS_X = 3*CH; LDS = LDS_X + 8192
NV = 168
sWv = 3
def _bf(x): return bf16(float(x))
def tab_F1():
    out = []
    for w in range(2):
        for j in range(4):
            for l in range(64):
                i, kh = l & 31, l >> 5
                c = 16*w + (i >> 1); ro = i & 1
                for jj in range(8):
                    a = 8*j + 4*kh + (jj >> 1); ri = jj & 1
                    th = 2*math.pi*a*c/32
                    v = (math.cos(th) if ri == ro else (math.sin(th) if ri == 1 else -math.sin(th)))
                    out.append(_bf(v))
    return np.array(out, np.uint16).tobytes()
def tab_CS():
    out = []
    for dt in range(2):
        for st in range(4):
            for cs in range(2):
                for l in range(64):
                    i, kh = l & 31, l >> 5
                    d = 32*dt + i
                    for jj in range(8):
                        b = 16*st + 8*(jj >> 2) + 4*kh + (jj & 3)
                        th = 2*math.pi*b*d/64
                        out.append(_bf(math.cos(th) if cs == 0 else math.sin(th)))
    return np.array(out, np.uint16).tobytes()
def tab_TW1():
    out = []
    for w in range(2):
        for mt in range(2):
            for R2 in range(8):
                for l in range(64):
                    i, h = l & 31, l >> 5
                    c = 16*w + (i >> 1)
                    for R in (2*R2, 2*R2+1):
                        g, r = R >> 2, R & 3
                        b = 32*mt + 8*g + 4*h + r
                        ph = 2*math.pi*b*c/2048
                        out += [math.cos(ph), math.sin(ph) if (i & 1) == 0 else -math.sin(ph)]
    return np.array(out, np.float32).tobytes()
def tab_TW2():
    out = []
    for w in range(2):
        for bt in range(2):
            for g in range(4):
                for l in range(64):
                    i, h = l & 31, l >> 5
                    b = 32*bt + i
                    for P in range(2):
                        c = 16*w + 4*g + 2*h + P
                        ph = 2*math.pi*b*c/2048
                        out += [math.cos(ph), math.sin(ph)]
    return np.array(out, np.float32).tobytes()
def tab_F4():
    out = []
    for nt in range(2):
        for st in range(4):
            w2, u = st >> 1, st & 1
            for l in range(64):
                i, kh = l & 31, l >> 5
                a = 16*nt + (i >> 1); ro = i & 1
                for jj in range(8):
                    q = jj >> 1; ri = jj & 1
                    c = 16*w2 + 4*(2*u + (q >> 1)) + 2*kh + (q & 1)
                    th = 2*math.pi*a*c/32
                    v = (math.cos(th) if ri == ro else (-math.sin(th) if ri == 1 else math.sin(th)))
                    out.append(_bf(v))
    return np.array(out, np.uint16).tobytes()
OF1, OCS, OTW1, OTW2, OF4 = 0, 8192, 8192+16384, 8192+16384+32768, 8192+16384+32768+16384
def tables():
    b = tab_F1() + tab_CS() + tab_TW1() + tab_TW2() + tab_F4()
    assert len(b) == OF4 + 8192
    return data_text('FTAB', b)
DPP = 'quad_perm:[1,0,3,2] row_mask:0xf bank_mask:0xf'

FUSE = False
FINEV = os.environ.get('FINE', '1')
FINE = FINEV != '0'
F1E = bool(os.environ.get('F1E'))
def fft_wave(a):
    XA, F1, D, TW, PB, PS, CS, WA, WB, T = 8, 40, 56, 88, 8, 24, 88, 40, 152, 2
    def wreg(k): return (WA + 2*k) if k < 8 else (WB + 2*(k-8))
    a(f's_sub_u32 s4, s{sWv}, 8\ns_and_b32 s5, s4, 1\ns_lshr_b32 s4, s4, 1\ns_lshl_b32 s6, s2, 1\ns_add_u32 s6, s6, s4')
    a('s_cmp_ge_u32 s6, 289\ns_cbranch_scc1 K2_end')
    if os.environ.get('NOFFT'): a('s_branch K2_end')
    a('s_setprio %s' % os.environ.get('FFTPRIO', '0' if FINE else '3'))
    pc_addr(a, 24, 'FTAB', 'K2_pc1')
    a('s_waitcnt lgkmcnt(0)')
    srd(a, 8, 40, 288*8192, WS_XC); srd(a, 12, 40, 289*16384, WS_WT); srd(a, 16, 40, 576*4096, WS_ZC); srd(a, 20, 24, OF4+8192)
    a('s_cmp_eq_u32 s6, 288\ns_cselect_b32 s7, 0, s6\ns_lshl_b32 s28, s7, 13\ns_add_u32 s29, s28, 4096')
    a('v_and_b32 v1, 31, v0\nv_lshrrev_b32 v6, 5, v0\nv_lshlrev_b32 v7, 2, v1\nv_lshl_add_u32 v7, v6, 10, v7')
    for mt in range(2):
        for j in range(4):
            for q in range(4):
                off = 2048*j + 256*q + 128*mt
                a(f'buffer_load_dword v{XA+16*mt+4*j+q}, v7, s[8:11], s{28 if off < 4096 else 29} offen offset:{off & 4095}')
    a('v_lshlrev_b32 v160+0, 4, v0'.replace('v160+0', 'v168') if False else '')
    if not F1E: a('s_barrier')
    a('v_lshlrev_b32 v5, 4, v0')
    def tload(dst, off_expr_s, imm):
        a(f'buffer_load_dwordx4 v[{dst}:{dst+3}], v5, s[20:23], s{off_expr_s} offen offset:{imm}')
    a(f's_lshl_b32 s30, s5, 12\ns_add_u32 s30, s30, {OF1}')
    for j in range(4): tload(F1+4*j, 30, 1024*j)
    if F1E: a('s_barrier')
    for mt in range(2):
        for half in range(2):
            a(f's_mul_i32 s30, s5, 16384\ns_add_u32 s30, s30, {OTW1 + 8192*mt + 4096*half}')
            for k in range(4): tload(TW + 32*mt + 16*half + 4*k, 30, 1024*k)
    a('v_and_b32 v2, 1, v0\nv_cmp_eq_u32 vcc, 1, v2\nv_mov_b32 v3, 0x80008000\nv_mov_b32 v4, 0')
    a('s_nop 0\nv_cndmask_b32 v6, v4, v3, vcc\nv_cndmask_b32 v7, v3, v4, vcc')
    a('v_mov_b32 v2, -1.0\nv_mov_b32 v3, 1.0\nv_cndmask_b32 v1, v2, v3, vcc')
    stamp(a, 1, 92)
    a('s_waitcnt vmcnt(20)')
    a('s_cmp_eq_u32 s6, 0\ns_cbranch_scc1 K2f_sp0\ns_cmp_eq_u32 s6, 288\ns_cbranch_scc0 K2f_nosp')
    for k in range(32): a(f'v_lshrrev_b32 v{XA+k}, 16, v{XA+k}')
    a('s_branch K2f_nosp\nK2f_sp0:')
    for k in range(32): a(f'v_and_b32 v{XA+k}, 0xffff, v{XA+k}')
    a('K2f_nosp:')
    a('s_waitcnt vmcnt(16)\ns_nop 1')
    for mt in range(2):
        for j in range(4):
            c = '0' if j == 0 else f'v[{D+16*mt}:{D+16*mt+15}]'
            a(f'v_mfma_f32_32x32x16_bf16 v[{D+16*mt}:{D+16*mt+15}], v[{XA+16*mt+4*j}:{XA+16*mt+4*j+3}], v[{F1+4*j}:{F1+4*j+3}], {c}')
    a('s_barrier')
    a('s_waitcnt vmcnt(0)\ns_nop 7\ns_nop 3')
    def cmul_lane(dreg, creg, sreg, tdst):
        a(f'v_mul_f32 v{tdst}, v{dreg}, v{creg}\nv_fmac_f32_dpp v{tdst}, v{dreg}, v{sreg} {DPP}')
    for mt in range(2):
        if mt == 1 and FINEV in '1a': a('s_barrier')
        for R2 in range(8):
            tw = TW + 32*mt + 4*R2; d = D + 16*mt + 2*R2
            cmul_lane(d, tw, tw+1, T); cmul_lane(d+1, tw+2, tw+3, T+1)
            a(f'v_cvt_pk_bf16_f32 v{PB+8*mt+R2}, v{T}, v{T+1}')
    a('s_nop 1')
    for k in range(16): a(f'v_xor_b32_dpp v{PS+k}, v{PB+k}, v6 {DPP}')
    for dt in range(2):
        for half in range(2):
            a(f's_mov_b32 s30, {OCS + 8192*dt + 4096*half}')
            for k in range(4): tload(CS + 32*dt + 16*half + 4*k, 30, 1024*k)
    a('v_and_b32 v2, 31, v0\nv_lshrrev_b32 v2, 1, v2\ns_lshl_b32 s30, s5, 4\nv_add_u32 v2, s30, v2\nv_lshlrev_b32 v2, 3, v2\nv_lshrrev_b32 v3, 5, v0\nv_lshl_add_u32 v4, v3, 10, v2')
    def wload(dt):
        for g in range(4):
            a(f's_lshl_b32 s30, s6, 14\ns_add_u32 s30, s30, {8192*dt + 2048*g}')
            for r in range(4):
                k = 4*g + r
                a(f'buffer_load_dwordx2 v[{wreg(k)}:{wreg(k)+1}], v4, s[12:15], s30 offen offset:{256*r}')
    wload(0)
    stamp(a, 2, 92)
    a('s_barrier')
    a('s_waitcnt vmcnt(16)')
    for dt in range(2):
        first = True
        for st in range(4):
            for cs in range(2):
                src = (PB if cs == 0 else PS) + 4*st
                c = '0' if first else f'v[{D+16*dt}:{D+16*dt+15}]'; first = False
                f = CS + 32*dt + 8*st + 4*cs
                a(f'v_mfma_f32_32x32x16_bf16 v[{D+16*dt}:{D+16*dt+15}], v[{f}:{f+3}], v[{src}:{src+3}], {c}')
    if FINEV in '1b': a('s_barrier')
    a('s_waitcnt vmcnt(0)\ns_nop 7\ns_nop 3')
    def wmul(dt):
        for k in range(0, 16, 2):
            for e in range(2):
                wr = wreg(k+e); d = D + 16*dt + k + e
                a(f'v_mul_f32 v{wr+1}, v{wr+1}, v1')
                cmul_lane(d, wr, wr+1, T+e)
            a(f'v_cvt_pk_bf16_f32 v{PB+8*dt+(k>>1)}, v{T}, v{T+1}')
    wmul(0)
    wload(1)
    a('s_barrier')
    a('s_waitcnt vmcnt(0)')
    wmul(1)
    a('s_nop 1')
    for k in range(16): a(f'v_xor_b32_dpp v{PS+k}, v{PB+k}, v7 {DPP}')
    def t2reg(bt, g): return (WA if bt == 0 else WB) + 4*g
    for bt in range(2):
        a(f's_lshl_b32 s30, s5, 13\ns_add_u32 s30, s30, {OTW2 + 4096*bt}')
        for g in range(4): tload(t2reg(bt, g), 30, 1024*g)
    for bt in range(2):
        first = True
        for st in range(4):
            for cs in range(2):
                src = (PB if cs == 0 else PS) + 4*st
                c = '0' if first else f'v[{D+16*bt}:{D+16*bt+15}]'; first = False
                f = CS + 32*bt + 8*st + 4*cs
                a(f'v_mfma_f32_32x32x16_bf16 v[{D+16*bt}:{D+16*bt+15}], v[{src}:{src+3}], v[{f}:{f+3}], {c}')
    a('s_barrier')
    for nt in range(2):
        a(f's_mov_b32 s30, {OF4 + 4096*nt}')
        for st in range(4): tload(CS + 16*nt + 4*st, 30, 1024*st)
    a('s_waitcnt vmcnt(8)\ns_nop 7')
    E = 8
    for bt in range(2):
        for g in range(4):
            for P in range(2):
                d = D + 16*bt + 4*g + 2*P; tw = t2reg(bt, g) + 2*P
                a(f'v_mul_f32 v{T}, v{d}, v{tw}\nv_mul_f32 v{T+1}, v{d+1}, v{tw}')
                a(f'v_fma_f32 v{T}, -v{d+1}, v{tw+1}, v{T}\nv_fma_f32 v{T+1}, v{d}, v{tw+1}, v{T+1}')
                a(f'v_cvt_pk_bf16_f32 v{E+8*bt+2*g+P}, v{T}, v{T+1}')
    a(f's_sub_u32 s30, s{sWv}, 8\ns_lshl_b32 s30, s30, 11\ns_add_u32 s30, s30, {LDS_X}\nv_add_u32 v2, s30, v5')
    a('s_cmp_eq_u32 s5, 0\ns_cbranch_scc1 K2f_w0')
    a('ds_write_b128 v2, v[8:11]\nds_write_b128 v2, v[12:15] offset:1024')
    for k in range(8): a(f'v_mov_b32 v{32+k}, v{16+k}')
    a('s_branch K2f_wj\nK2f_w0:')
    a('ds_write_b128 v2, v[16:19]\nds_write_b128 v2, v[20:23] offset:1024')
    for k in range(8): a(f'v_mov_b32 v{24+k}, v{8+k}')
    a('K2f_wj:')
    stamp(a, 3, 92)
    a('s_waitcnt lgkmcnt(0)\ns_barrier')
    a('v_xor_b32 v2, 2048, v2')
    a('s_cmp_eq_u32 s5, 0\ns_cbranch_scc1 K2f_r0')
    a('ds_read_b128 v[24:27], v2\nds_read_b128 v[28:31], v2 offset:1024\ns_branch K2f_rj\nK2f_r0:')
    a('ds_read_b128 v[32:35], v2\nds_read_b128 v[36:39], v2 offset:1024\nK2f_rj:')
    a('s_waitcnt vmcnt(0) lgkmcnt(0)')
    for nt in range(2):
        for st in range(4):
            c = '0' if st == 0 else f'v[{D+16*nt}:{D+16*nt+15}]'
            f = CS + 16*nt + 4*st
            a(f'v_mfma_f32_32x32x16_bf16 v[{D+16*nt}:{D+16*nt+15}], v[{24+4*st}:{24+4*st+3}], v[{f}:{f+3}], {c}')
    a('v_and_b32 v2, 31, v0\nv_lshrrev_b32 v3, 1, v2\nv_lshlrev_b32 v3, 7, v3\nv_lshrrev_b32 v4, 5, v0\nv_lshl_add_u32 v3, v4, 3, v3\nv_and_b32 v2, 1, v2')
    a('s_lshl_b32 s31, s5, 6\ns_add_u32 s31, s31, s28')
    a('s_cmp_eq_u32 s6, 0\ns_cbranch_scc1 K2f_st0\ns_cmp_eq_u32 s6, 288\ns_cbranch_scc1 K2f_st288')
    a('v_lshl_add_u32 v3, v2, 12, v3\ns_branch K2f_stj')
    a('K2f_st288:\nv_add_u32 v3, 4096, v3\nK2f_st0:\nv_cmp_eq_u32 vcc, 0, v2\ns_nop 1\ns_and_b64 exec, exec, vcc')
    a('K2f_stj:\ns_nop 7')
    for nt in range(2):
        for g in range(4):
            d = D + 16*nt + 4*g; p = 8 + 2*(4*nt+g)
            a(f'v_cvt_pk_bf16_f32 v{p}, v{d}, v{d+1}\nv_cvt_pk_bf16_f32 v{p+1}, v{d+2}, v{d+3}')
            a(f'buffer_store_dwordx2 v[{p}:{p+1}], v3, s[16:19], s31 offen offset:{2048*nt + 16*g}' + (' sc1' if FUSE else ''))
    if STAMP:
        a('s_mov_b64 exec, -1\ns_waitcnt vmcnt(0)\ns_lshl_b32 s26, s3, 6\nv_add_u32 v123, s26, v0'); stamp(a, 4, 92); stamp_flush(a, 5, 92)
    if FUSE: a('s_waitcnt vmcnt(0)')
    a('s_endpgm')

def attn_wave(a):
    Q1, Q2, S, P, O = 2, 6, [8, 24], 40, 48
    Kf, Vf = [64, 72], [80, 88]
    aK1, aK2, aV = [96, 99], [97, 100], [98, 101]
    T = 104
    if os.environ.get('NOXQ'): a(f's_lshr_b32 s4, s2, 2\ns_and_b32 s5, s2, 3\ns_lshl_b32 s5, s5, 3\ns_add_u32 s5, s5, s{sWv}')
    else:
        a(f's_and_b32 s4, s2, 7\ns_lshl_b32 s4, s4, 3\ns_lshr_b32 s5, s2, 5\ns_add_u32 s4, s4, s5\ns_lshr_b32 s5, s2, 3\ns_and_b32 s5, s5, 3\ns_lshl_b32 s5, s5, 3\ns_add_u32 s5, s5, s{sWv}')
    a('s_waitcnt lgkmcnt(0)')
    srd(a, 8, 40, NB_ACT, WS_Q); srd(a, 12, 40, 64*KVT, WS_KV); srd(a, 16, 40, NB_ACT, WS_O)
    srd(a, 28, 40, 256, WS_KMX)
    a('v_lshlrev_b32 v102, 4, v0\nv_lshlrev_b32 v116, 2, v0\nbuffer_load_dword v117, v116, s[28:31], 0 offen')
    a(f's_mul_i32 s20, s{sWv}, {KVT}')
    def dmap(n, g_s, l_s):
        if n == 2: a('s_mov_b32 exec_hi, 0')
        a(f's_add_u32 m0, s{l_s}, {1024*n}\ns_add_u32 s27, s{g_s}, {1024*n}\nbuffer_load_dwordx4 v102, s[12:15], s27 offen lds')
        if n == 2: a('s_mov_b32 exec_hi, -1')
    a(f'v_and_b32 v1, 31, v0\ns_lshl_b32 s6, s4, 5\nv_add_u32 v{T}, s6, v1\ns_movk_i32 s7, 1152\nv_mul_lo_u32 v{T}, v{T}, s7')
    a(f'v_lshrrev_b32 v{T+1}, 5, v0\nv_lshl_add_u32 v103, v{T+1}, 3, v{T}\ns_mul_i32 s7, s5, 36')
    a(f'buffer_load_dwordx2 v[{Q1}:{Q1+1}], v103, s[8:11], s7 offen\nbuffer_load_dwordx2 v[{Q1+2}:{Q1+3}], v103, s[8:11], s7 offen offset:16')
    a(f'buffer_load_dword v{Q2}, v{T}, s[8:11], s7 offen offset:32')
    a('s_mov_b32 s22, s20\ns_mov_b32 s23, s20')
    for n in range(3): dmap(n, 22, 23)
    a(f's_add_u32 s22, s20, {CH}\ns_add_u32 s23, s20, {CH}')
    for n in range(2): dmap(n, 22, 23)
    a(f'v_lshlrev_b32 v{aK1[0]}, 4, v0\nv_lshlrev_b32 v{aK2[0]}, 3, v1\nv_add_u32 v{aK2[0]}, 1024, v{aK2[0]}')
    a(f'v_mov_b32 v{T+2}, 19\nv_cmp_gt_u32 vcc, 19, v1\ns_nop 1\nv_cndmask_b32 v{T+2}, v{T+2}, v1, vcc')
    if False: a(f'v_subrev_u32 v{T+3}, 20, v1\nv_cmp_gt_u32 vcc, 8, v{T+3}\ns_nop 1\nv_cndmask_b32 v{T+2}, v{T+2}, 0, vcc'.replace(f'v_cndmask_b32 v{T+2}, v{T+2}, 0, vcc', f'v_mov_b32 v{T+3}, 0\nv_cndmask_b32 v{T+2}, v{T+2}, v{T+3}, vcc'))
    a(f'v_mul_u32_u24 v{T+3}, 20, v{T+1}\nv_add_u32 v{T+2}, v{T+2}, v{T+3}\nv_lshlrev_b32 v{T+2}, 4, v{T+2}\nv_add_u32 v{aV[0]}, 1280, v{T+2}')
    for r in (aK1, aK2, aV): a(f'v_add_u32 v{r[1]}, {CH}, v{r[0]}')
    for i in range(16): a(f'v_mov_b32 v{O+i}, 0')
    a('s_waitcnt vmcnt(2)')
    for ctl in ('row_shr:1', 'row_shr:2', 'row_shr:4', 'row_shr:8', 'row_bcast:15 row_mask:0xa', 'row_bcast:31 row_mask:0xc'):
        rm = '' if 'row_mask' in ctl else ' row_mask:0xf'
        a(f's_nop 1\nv_max_u32_dpp v117, v117, v117 {ctl}{rm} bank_mask:0xf')
    a('s_nop 1\nv_readlane_b32 s44, v117, 63')
    a(f'v_cmp_gt_u32 vcc, 32, v0\nv_mov_b32 v{T}, 0\ns_nop 0\nv_cndmask_b32 v{Q2}, v{T}, v{Q2}, vcc')
    a(f'v_dot2_f32_bf16 v{T}, v{Q1}, v{Q1}, v{T}')
    for r in (Q1+1, Q1+2, Q1+3, Q2): a(f's_nop 2\nv_dot2_f32_bf16 v{T}, v{r}, v{r}, v{T}')
    a(f's_nop 2\nv_mov_b32 v{T+1}, v{T}\ns_nop 1\nv_permlane32_swap_b32 v{T}, v{T+1}\nv_add_f32 v{T}, v{T}, v{T+1}')
    a(f'v_mul_f32 v{T}, s44, v{T}\nv_sqrt_f32 v{T}, v{T}\ns_nop 0\nv_mul_f32 v{T}, {f32bits(-(1+2**-6)):#x}, v{T}')
    a(f'v_mov_b32 v{T+1}, 0\nv_cvt_pk_bf16_f32 v{T}, v{T}, v{T+1}\nv_cndmask_b32 v{Q2+1}, v{T+1}, v{T}, vcc')
    stamp(a, 1, 92)
    a('s_barrier')
    stamp(a, 2, 92)
    def rdK(buf, areg, u):
        a(f'ds_read_b128 v[{Kf[buf]}:{Kf[buf]+3}], v{aK1[areg]} offset:{u*KVT}\nds_read_b64 v[{Kf[buf]+4}:{Kf[buf]+5}], v{aK2[areg]} offset:{u*KVT}')
    def rdV(buf, areg, u):
        a(f'ds_read_b128 v[{Vf[buf]}:{Vf[buf]+3}], v{aV[areg]} offset:{u*KVT}\nds_read_b128 v[{Vf[buf]+4}:{Vf[buf]+7}], v{aV[areg]} offset:{u*KVT+640}')
    def qk1(sb, kb): a(f'v_mfma_f32_32x32x16_bf16 v[{S[sb]}:{S[sb]+15}], v[{Kf[kb]}:{Kf[kb]+3}], v[{Q1}:{Q1+3}], 0')
    def qk2(sb, kb): a(f'v_mfma_f32_32x32x8bf16_1k v[{S[sb]}:{S[sb]+15}], v[{Kf[kb]+4}:{Kf[kb]+5}], v[{Q2}:{Q2+1}], v[{S[sb]}:{S[sb]+15}]')
    def rdK1(buf, areg, u): a(f'ds_read_b128 v[{Kf[buf]}:{Kf[buf]+3}], v{aK1[areg]} offset:{u*KVT}')
    def rdK2(buf, areg, u): a(f'ds_read_b64 v[{Kf[buf]+4}:{Kf[buf]+5}], v{aK2[areg]} offset:{u*KVT}')
    def rdV1(buf, areg, u): a(f'ds_read_b128 v[{Vf[buf]}:{Vf[buf]+3}], v{aV[areg]} offset:{u*KVT}')
    def rdV2(buf, areg, u): a(f'ds_read_b128 v[{Vf[buf]+4}:{Vf[buf]+7}], v{aV[areg]} offset:{u*KVT+640}')
    def pv(h, vb): a(f'v_mfma_f32_32x32x16_bf16 v[{O}:{O+15}], v[{Vf[vb]+4*h}:{Vf[vb]+4*h+3}], v[{P+4*h}:{P+4*h+3}], v[{O}:{O+15}]')
    rdK(0, 0, 0); rdK(1, 0, 1); rdV(0, 0, 0)
    for i in range(4): a(f'v_mov_b32 v{P+4+i}, 0\nv_mov_b32 v{Vf[1]+4+i}, 0')
    a('s_waitcnt lgkmcnt(4)'); qk1(0, 0); qk2(0, 0)
    a(f's_mov_b32 s24, 0\ns_mov_b32 s25, {2*CH}')
    a('s_nop 7\ns_nop 3')
    a('.p2align 6\nK2a_loop:')
    for u in range(8):
        b = u & 1; s = S[b]
        ex = lambda lo, hi: [a(f'{"v_mov_b32" if os.environ.get("NOEXP") else "v_exp_f32"} v{s+i}, v{s+i}') for i in range(lo, hi)]
        cv = lambda lo, hi: [a(f'v_cvt_pk_bf16_f32 v{P+i}, v{s+2*i}, v{s+2*i+1}') for i in range(lo, hi)]
        ka, ku = (0, u+2) if u + 2 < 8 else (1, u+2-8)
        va, vu = (0, u+1) if u + 1 < 8 else (1, 0)
        if u == 6:
            a('s_waitcnt vmcnt(0) lgkmcnt(0)\ns_barrier')
            a(f's_add_u32 s22, s22, {CH}\ns_add_u32 s23, s20, s25')
        else: a('s_waitcnt lgkmcnt(0)')
        qk1(1-b, 1-b)
        rdK1(b, ka, ku)
        if u in (6, 7, 0): dmap({6: 0, 7: 1, 0: 2}[u], 22, 23)
        ex(0, 5)
        pv(1, 1-b)
        rdK2(b, ka, ku)
        ex(5, 8); cv(0, 4)
        qk2(1-b, 1-b)
        rdV1(1-b, va, vu)
        ex(8, 12)
        pv(0, b)
        rdV2(1-b, va, vu)
        ex(12, 16); cv(4, 8)
    for r in (aK1, aK2, aV): a(f'v_mov_b32 v{r[0]}, v{r[1]}')
    for r, k in ((aK1, 0), (aK2, 1), (aV, 2)): a(f'v_add_u32 v{r[1]}, s25, v{T+8+k}')
    a(f's_add_u32 s25, s25, {CH}\ns_cmp_ge_u32 s25, {3*CH}\ns_cselect_b32 s25, 0, s25')
    a('s_add_u32 s24, s24, 1\ns_cmp_lt_u32 s24, 8\ns_cbranch_scc1 K2a_loop')
    a('s_nop 1'); pv(1, 1)
    a('s_waitcnt vmcnt(0) lgkmcnt(0)\ns_nop 7\ns_nop 7')
    stamp(a, 3, 92)
    a(f'v_mov_b32 v{T}, v{O+10}\nv_mov_b32 v{T+1}, v{O+10}\ns_nop 1\nv_permlane32_swap_b32 v{T}, v{T+1}')
    a(f's_mov_b32 s26, {f32bits(2.0**-80)}\nv_cmp_nle_f32 vcc, s26, v{T}\ns_nop 1\ns_nop 3\ns_cbranch_vccnz K2a_slow')
    a('K2a_fin:')
    a(f'v_rcp_f32 v{T}, v{T}\ns_nop 0')
    for i in range(10): a(f'v_mul_f32 v{O+i}, v{O+i}, v{T}')
    for i in range(5): a(f'v_cvt_pk_bf16_f32 v{P+i}, v{O+2*i}, v{O+2*i+1}')
    sc = ' sc1' if FUSE else ''
    a(f'buffer_store_dwordx2 v[{P}:{P+1}], v103, s[16:19], s7 offen{sc}\nbuffer_store_dwordx2 v[{P+2}:{P+3}], v103, s[16:19], s7 offen offset:16{sc}')
    a(f'v_cmp_gt_u32 vcc, 32, v0\ns_nop 1\ns_and_b64 exec, exec, vcc\nbuffer_store_dword v{P+4}, v103, s[16:19], s7 offen offset:32{sc}')
    if STAMP and not FUSE:
        a('s_mov_b64 exec, -1\ns_waitcnt vmcnt(0)'); stamp(a, 4, 92); stamp_flush(a, 5, 92)
    if FUSE: a('s_mov_b64 exec, -1\ns_branch K23_tail')
    else: a('s_endpgm')
    a('K2a_slow:')
    a(f'v_lshlrev_b32 v{T+4}, 4, v0\nv_lshlrev_b32 v{T+5}, 3, v1\nv_add_u32 v{T+5}, 1024, v{T+5}\nv_mov_b32 v{T+6}, v{T+10}')
    a(f'v_and_b32 v{Q2+1}, 0, v{Q2+1}\nv_mov_b32 v{T+7}, 0xff7fffff\ns_mov_b32 s26, 0')
    a('K2a_s1:')
    a(f'buffer_load_dwordx4 v[{Kf[0]}:{Kf[0]+3}], v{T+4}, s[12:15], s26 offen\nbuffer_load_dwordx2 v[{Kf[0]+4}:{Kf[0]+5}], v{T+5}, s[12:15], s26 offen\ns_waitcnt vmcnt(0)')
    qk1(0, 0); qk2(0, 0); a('s_nop 7\ns_nop 7')
    for i in range(16): a(f'v_max_f32 v{T+7}, v{T+7}, v{S[0]+i}')
    a(f's_add_u32 s26, s26, {KVT}\ns_cmp_lt_u32 s26, {64*KVT}\ns_cbranch_scc1 K2a_s1')
    a(f'v_mov_b32 v{T}, v{T+7}\ns_nop 1\nv_permlane32_swap_b32 v{T}, v{T+7}\nv_max_f32 v{T+7}, v{T+7}, v{T}')
    for i in range(16): a(f'v_mov_b32 v{O+i}, 0')
    a('s_mov_b32 s26, 0\nK2a_s2:')
    a(f'buffer_load_dwordx4 v[{Kf[0]}:{Kf[0]+3}], v{T+4}, s[12:15], s26 offen\nbuffer_load_dwordx2 v[{Kf[0]+4}:{Kf[0]+5}], v{T+5}, s[12:15], s26 offen')
    a(f'buffer_load_dwordx4 v[{Vf[0]}:{Vf[0]+3}], v{T+6}, s[12:15], s26 offen\nbuffer_load_dwordx4 v[{Vf[0]+4}:{Vf[0]+7}], v{T+6}, s[12:15], s26 offen offset:640\ns_waitcnt vmcnt(0)')
    qk1(0, 0); qk2(0, 0); a('s_nop 7\ns_nop 7')
    for i in range(16): a(f'v_sub_f32 v{S[0]+i}, v{S[0]+i}, v{T+7}\nv_exp_f32 v{S[0]+i}, v{S[0]+i}')
    a('s_nop 0')
    for i in range(8): a(f'v_cvt_pk_bf16_f32 v{P+i}, v{S[0]+2*i}, v{S[0]+2*i+1}')
    a('s_nop 1')
    a(f'v_mfma_f32_32x32x16_bf16 v[{O}:{O+15}], v[{Vf[0]}:{Vf[0]+3}], v[{P}:{P+3}], v[{O}:{O+15}]')
    a(f'v_mfma_f32_32x32x16_bf16 v[{O}:{O+15}], v[{Vf[0]+4}:{Vf[0]+7}], v[{P+4}:{P+7}], v[{O}:{O+15}]')
    a(f's_add_u32 s26, s26, {KVT}\ns_cmp_lt_u32 s26, {64*KVT}\ns_cbranch_scc1 K2a_s2')
    a('s_nop 7\ns_nop 7')
    a(f'v_mov_b32 v{T}, v{O+10}\nv_mov_b32 v{T+1}, v{O+10}\ns_nop 1\nv_permlane32_swap_b32 v{T}, v{T+1}\ns_branch K2a_fin')

def k2(a):
    a('K2_base:')
    a('s_cmp_ge_u32 s2, 256\ns_cbranch_scc1 K2_end')
    a('s_load_dwordx2 s[40:41], s[0:1], 80')
    a(f'v_lshrrev_b32 v1, 6, v0\ns_nop 0\nv_readfirstlane_b32 s{sWv}, v1\nv_and_b32 v0, 63, v0\ns_nop 2')
    if STAMP: a('v_lshl_add_u32 v123, v1, 6, v0')
    stamp(a, 0, 92)
    a(f's_cmp_ge_u32 s{sWv}, 8\ns_cbranch_scc1 K2_fft')
    b = Asm(); attn_wave(b)
    txt = b.text().replace("    v_mov_b32 v48, 0\n", "    v_mov_b32 v112, v96\n    v_mov_b32 v113, v97\n    v_mov_b32 v114, v98\n    v_mov_b32 v48, 0\n", 1)
    a.l.append(txt.rstrip('\n'))
    a('K2_fft:')
    fft_wave(a)
    a('K2_end:\ns_endpgm')
    if FUSE:
        import k3
        a('K23_tail:')
        ST5[0] = True
        if STAMP: a('s_lshl_b32 s26, s3, 6\nv_add_u32 v123, s26, v0')
        stamp(a, 0)
        a('s_load_dwordx2 s[42:43], s[0:1], 72')
        a('s_waitcnt vmcnt(0)\ns_barrier')
        stamp(a, 5)
        a('s_waitcnt lgkmcnt(0)')
        srd(a, 28, 42, 256)
        a(f's_cmp_lg_u32 s{sWv}, 0\ns_cbranch_scc1 K23_np')
        a('v_mov_b32 v2, 1\nv_mov_b32 v3, s2\ns_mov_b32 exec_hi, 0\ns_mov_b32 exec_lo, 1\nbuffer_store_byte v2, v3, s[28:31], 0 offen sc1\ns_mov_b64 exec, -1')
        a('s_cmp_ge_u32 s2, 192\ns_cbranch_scc1 K23_np')
        a('v_lshlrev_b32 v3, 2, v0\ns_mov_b32 s26, 0')
        a('K23_poll:\nbuffer_load_dword v2, v3, s[28:31], 0 offen sc1\ns_add_u32 s26, s26, 1\ns_waitcnt vmcnt(0)')
        a('v_cmp_ne_u32 vcc, 0x01010101, v2\ns_cmp_ge_u32 s26, 0x8000\ns_cbranch_scc1 K23_got\ns_nop 1\ns_cbranch_vccnz K23_poll')
        a('K23_got:')
        stamp(a, 6)
        a('buffer_inv sc1\ns_waitcnt vmcnt(0)')
        stamp(a, 7)
        a('K23_np:\ns_cmp_ge_u32 s2, 192\ns_cbranch_scc1 K2_end2')
        a('s_barrier')
        k3.k3(a, fused=True)
        a('K2_end2:\ns_endpgm')
```

```python
from gemm import *
import os
def k1(a):
    only = os.environ.get('K1ONLY')
    a('s_cmp_ge_u32 s2, 256\ns_cbranch_scc1 K1_end')
    a('s_load_dwordx4 s[36:39], s[0:1], 0\ns_load_dwordx4 s[40:43], s[0:1], 16\ns_load_dwordx4 s[44:47], s[0:1], 32\ns_load_dwordx2 s[48:49], s[0:1], 48\ns_load_dwordx2 s[50:51], s[0:1], 80')
    lane_ids(a)
    if only:
        lo, hi = {'q': (0,96), 'a': (96,192), 'kv': (192,208), 'wt': (208,256)}[only]
        a(f's_cmp_lt_u32 s2, {lo}\ns_cbranch_scc1 K1_end\ns_cmp_ge_u32 s2, {hi}\ns_cbranch_scc1 K1_end')
    a('s_cmp_ge_u32 s2, 208\ns_cbranch_scc1 K1_wt')
    a('s_cmp_ge_u32 s2, 192\ns_cbranch_scc1 K1_kv')
    a('s_cmp_ge_u32 s2, 96\ns_cbranch_scc1 K1_af')
    a(f's_lshr_b32 s{sT0}, s2, 3\ns_and_b32 s{sT1}, s2, 7\ns_lshl_b32 s{sT1}, s{sT1}, 1\ns_cmp_ge_u32 s{sT0}, 6\ns_cselect_b32 s{sT2}, 1, 0\ns_add_u32 s{sT1}, s{sT1}, s{sT2}\ns_lshl_b32 s{sRow0}, s{sT1}, 7\ns_mul_i32 s{sT2}, s{sT2}, 6\ns_sub_u32 s{sT0}, s{sT0}, s{sT2}\ns_mul_i32 s{sCol0}, s{sT0}, 96')
    a('s_waitcnt lgkmcnt(0)')
    srd(a, sS, 42, NB_ACT); srd(a, sW, 44, 576*576*2); srd(a, sO, 50, NB_ACT, WS_Q)
    a(f's_mul_i32 s33, s{sRow0}, 1152\ns_lshl_b32 s34, s{sCol0}, 1\ns_add_u32 s33, s33, s34')
    def su(part): setup_R(a, 'S', 1152, sRow0, part); setup_T(a, 'W', 1152, sCol0, part)
    gemm_task(a, 'K1q', 'R', 'T', 128, 64*1152, su, 'row', 33, 1152, scale=QSCALE)
    a('K1_af:')
    a('s_sub_u32 s3, s2, 96')
    a(f's_lshr_b32 s{sT0}, s3, 3\ns_and_b32 s{sT1}, s3, 7\ns_lshl_b32 s{sT1}, s{sT1}, 1\ns_cmp_ge_u32 s{sT0}, 6\ns_cselect_b32 s{sT2}, 1, 0\ns_add_u32 s{sT1}, s{sT1}, s{sT2}\ns_lshl_b32 s{sRow0}, s{sT1}, 7\ns_mul_i32 s{sT2}, s{sT2}, 6\ns_sub_u32 s{sT0}, s{sT0}, s{sT2}\ns_mul_i32 s{sCol0}, s{sT0}, 96')
    pc_addr(a, 52, 'TTAB', 'K1_pc1')
    a('s_waitcnt lgkmcnt(0)')
    srd(a, sS, 36, NB_ACT); srd(a, sW, 52, 576*1152); srd(a, sO, 50, 288*8192, WS_XC)
    a(f's_lshl_b32 s33, s{sCol0}, 12\ns_lshl_b32 s34, s{sRow0}, 2\ns_add_u32 s33, s33, s34')
    def su(part): setup_R(a, 'S', 1152, sRow0, part); setup_R(a, 'W', 1152, sCol0, part)
    gemm_task(a, 'K1a', 'R', 'R', 128, 128, su, 'xc', 33, 8192)
    a('K1_kv:')
    a(f's_sub_u32 s3, s2, 192\ns_lshr_b32 s{sT0}, s3, 3\ns_and_b32 s3, s3, 7\ns_lshl_b32 s3, s3, 1\ns_add_u32 s3, s3, s{sT0}\ns_lshl_b32 s{sRow0}, s3, 7')
    a('s_waitcnt lgkmcnt(0)')
    srd(a, sS, 42, NB_ACT)
    a(f's_cmp_lt_u32 s{sWv}, 2\ns_cselect_b32 s52, s46, s48\ns_cselect_b32 s53, s47, s49')
    srd(a, sW, 52, 576*36); srd(a, sO, 50, 64*KVT + 0x40000, WS_KV)
    t = vT
    a(f's_cmp_lt_u32 s{sW8}, 4\ns_cbranch_scc1 K1kv_cp')
    setup_R(a, 'S', 1152, sRow0, 'dma')
    a(f's_and_b32 s{sT0}, s{sWv}, 1\ns_mul_i32 s{sT0}, s{sT0}, 320')
    a(f's_movk_i32 s{sT1}, 6554')
    for i in range(5):
        a(f'v_add_u32 v{t}, s{sT0}, v0\nv_add_u32 v{t}, {64*i}, v{t}\nv_mul_lo_u32 v{t+1}, v{t}, s{sT1}\nv_lshrrev_b32 v{t+1}, 16, v{t+1}')
        a(f'v_mul_u32_u24 v{t+2}, 10, v{t+1}\nv_sub_u32 v{t+2}, v{t}, v{t+2}\nv_min_u32 v{t+2}, 8, v{t+2}\nv_mul_u32_u24 v{t+1}, 36, v{t+1}\nv_lshl_add_u32 v{vW+i}, v{t+2}, 2, v{t+1}')
    loader(a, 'K1kv', 'R', 'T', 128, 64*36, kv=True)
    a('s_endpgm\nK1kv_cp:')
    setup_R(a, 'S', 1152, sRow0, 'rd')
    a(f'v_lshrrev_b32 v{t}, 5, v0\nv_lshlrev_b32 v{t}, 3, v{t}\nv_bfe_u32 v{t+1}, v0, 2, 2\nv_add_u32 v{t}, v{t}, v{t+1}\nv_mul_u32_u24 v{t}, 40, v{t}')
    a(f'v_bfe_u32 v{t+1}, v0, 4, 1\nv_lshl_add_u32 v{t}, v{t+1}, 5, v{t}\nv_and_b32 v{t+1}, 3, v0\nv_lshl_add_u32 v{t}, v{t+1}, 3, v{t}\nv_add_u32 v{vRW}, {WOFF}, v{t}')
    compute(a, 'K1kv', 'R', 'T', kv=True)
    a(f's_lshl_b32 s33, s3, 2\ns_add_u32 s33, s33, s{sWv}\ns_mul_i32 s34, s33, {KVT}')
    K = vA; V = vA+16
    for i in range(4): a(f'v_cvt_pk_bf16_f32 v{t+i}, v{K+2*i}, v{K+2*i+1}')
    a(f'v_lshlrev_b32 v{t+8}, 4, v0\nbuffer_store_dwordx4 v[{t}:{t+3}], v{t+8}, s[{sO}:{sO+3}], s34 offen')
    a(f'v_cvt_pk_bf16_f32 v{t+4}, v{K+8}, v{K+9}\nv_mov_b32 v{t+5}, 0x3f80\nv_lshlrev_b32 v{t+9}, 3, v0')
    a(f'v_mul_f32 v{t+6}, v{K}, v{K}')
    for i in range(1, 8): a(f'v_fmac_f32 v{t+6}, v{K+i}, v{K+i}')
    a(f'v_mul_f32 v{t+7}, v{K+8}, v{K+8}\nv_fmac_f32 v{t+7}, v{K+9}, v{K+9}')
    a(f'v_cmp_gt_u32 vcc, 32, v0\ns_nop 1\nv_cndmask_b32 v{t+7}, 0, v{t+7}, vcc\nv_add_f32 v{t+6}, v{t+6}, v{t+7}')
    a(f's_and_saveexec_b64 s[54:55], vcc\nbuffer_store_dwordx2 v[{t+4}:{t+5}], v{t+9}, s[{sO}:{sO+3}], s34 offen offset:1024\ns_mov_b64 exec, s[54:55]')
    a(f'v_mov_b32 v{t+7}, v{t+6}\ns_nop 1\nv_permlane32_swap_b32 v{t+6}, v{t+7}\nv_add_f32 v{t+6}, v{t+6}, v{t+7}')
    for off in (0x041F, 0x081F, 0x101F, 0x201F, 0x401F):
        a(f'ds_swizzle_b32 v{t+7}, v{t+6} offset:{off}\ns_waitcnt lgkmcnt(0)\nv_max_f32 v{t+6}, v{t+6}, v{t+7}')
    a(f's_lshl_b32 s35, s33, 2\ns_add_u32 s35, s35, {WS_KMX-WS_KV}\nv_mov_b32 v{t+10}, 0\nv_cmp_eq_u32 vcc, 0, v0')
    a(f's_and_saveexec_b64 s[54:55], vcc\nbuffer_store_dword v{t+6}, v{t+10}, s[{sO}:{sO+3}], s35 offen\ns_mov_b64 exec, s[54:55]')
    a(f'v_and_b32 v{t+8}, 31, v0\nv_lshrrev_b32 v{t+9}, 5, v0\nv_mul_u32_u24 v{t+9}, 20, v{t+9}\nv_add_u32 v{t+9}, v{t+9}, v{t+8}\nv_lshlrev_b32 v{t+9}, 4, v{t+9}')
    a(f'v_cmp_eq_u32 s[56:57], 18, v{t+8}\nv_cmp_eq_u32 s[58:59], 19, v{t+8}\nv_cmp_ge_u32 vcc, 19, v{t+8}\nv_mov_b32 v{t+10}, 0x3f803f80')
    for m in range(2):
        for i in range(4):
            a(f'v_cvt_pk_bf16_f32 v{t+4*m+i}, v{V+8*m+2*i}, v{V+8*m+2*i+1}\nv_cndmask_b32 v{t+4*m+i}, v{t+4*m+i}, v{t+10}, s[56:57]\nv_cndmask_b32 v{t+4*m+i}, v{t+4*m+i}, 0, s[58:59]')
    a(f's_and_saveexec_b64 s[54:55], vcc')
    for m in range(2): a(f'buffer_store_dwordx4 v[{t+4*m}:{t+4*m+3}], v{t+9}, s[{sO}:{sO+3}], s34 offen offset:{1280+640*m}')
    a('s_mov_b64 exec, s[54:55]')
    if STAMP:
        a('s_waitcnt vmcnt(0)'); stamp(a, 4); stamp_flush(a, 5, 90, VST)
    a('s_endpgm')
    a('K1_wt:')
    a('s_sub_u32 s3, s2, 208\ns_waitcnt lgkmcnt(0)')
    srd(a, 8, 38, 2048*578); srd(a, 12, 40, 2048*578); srd(a, 16, 50, 289*(8192 if WTB else 16384), WS_WT)
    a('v_lshlrev_b32 v2, 4, v0\ns_mov_b32 s26, s10\ns_mov_b32 s27, s11')
    for k in range(3):
        a(f's_add_u32 s22, s3, {48*k}\ns_mul_i32 s22, s22, 9248')
        for n in range(3):
            if n == 2: a(f's_cmp_ge_u32 s{sW8}, 4\ns_cbranch_scc1 K1_wt_sk{k}')
            a(f's_add_u32 s20, s{sW8}, {8*n}\ns_cmp_lt_u32 s20, 10\ns_cselect_b32 s24, s8, s12\ns_cselect_b32 s25, s9, s13\ns_cselect_b32 s21, 0, 10\ns_sub_u32 s21, s20, s21')
            a(f's_lshl_b32 s21, s21, 10\ns_add_u32 s33, s22, s21\ns_lshl_b32 s20, s20, 10\ns_add_u32 m0, s20, {20480*k}\ns_nop 0\nbuffer_load_dwordx4 v2, s[24:27], s33 offen lds')
        a(f'K1_wt_sk{k}:')
    a(f'v_and_b32 v3, 15, v0\nv_lshrrev_b32 v4, 4, v0\ns_lshl_b32 s20, s{sW8}, 2\nv_add_u32 v4, s20, v4')
    a('v_mul_u32_u24 v5, 578, v3\nv_lshl_add_u32 v5, v4, 1, v5')
    if WTB: a('v_lshlrev_b32 v6, 13, v4\nv_lshl_add_u32 v6, v3, 2, v6')
    else: a('v_lshlrev_b32 v6, 14, v4\nv_lshl_add_u32 v6, v3, 3, v6')
    if not WTB: a(f's_mov_b32 s34, {f32bits(2.0/(2048*576))}\nv_mov_b32 v8, s34\nv_mov_b32 v9, {f32bits(1.0/(2048*576))}\nv_cmp_eq_u32 vcc, 0, v4\ns_nop 1\nv_cndmask_b32 v9, v8, v9, vcc')
    for i in range(20): a(f'v_mov_b32 v{10+i}, 0')
    a(f'v_add_u32 v30, {9*32*(8192 if WTB else 16384)}, v6')
    stamp(a, 1)
    a('s_waitcnt vmcnt(0)\ns_barrier')
    stamp(a, 2)
    a('s_mov_b32 s21, 0')
    a('K1_wt_task:')
    a('s_mul_i32 s22, s21, 48\ns_add_u32 s22, s22, s3\ns_cmp_ge_u32 s22, 128\ns_cbranch_scc1 K1_wt_done')
    a('s_lshl_b32 s22, s22, %d' % (6 if WTB else 7))
    a('s_mul_i32 s23, s21, 20480\nv_add_u32 v7, s23, v5')
    for it in range(10): a(f'{"ds_read_u16" if WTB else "ds_read_u16_d16_hi"} v{10+2*it}, v7 offset:{64*it}\nds_read_u16_d16_hi v{11+2*it}, v7 offset:{10240+64*it}')
    for it in range(10 if WTB else 0):
        p = 32 + it
        a(f's_waitcnt lgkmcnt({min(15, 18-2*it)})\nv_or_b32 v{p}, v{10+2*it}, v{11+2*it}')
        if it < 9: a(f's_add_u32 s33, s22, {it*32*8192}\nbuffer_store_dword v{p}, v6, s[16:19], s33 offen')
        else: a(f'buffer_store_dword v{p}, v30, s[16:19], s22 offen')
    for it in range(0 if WTB else 10):
        sc = 'v9' if it in (0, 9) else 's34'
        p = 32 + 2*it
        a(f's_waitcnt lgkmcnt({min(15, 18-2*it)})\nv_mul_f32 v{p}, {sc}, v{10+2*it}\nv_mul_f32 v{p+1}, {sc}, v{11+2*it}')
        if it < 9: a(f's_add_u32 s33, s22, {it*32*16384}\nbuffer_store_dwordx2 v[{p}:{p+1}], v6, s[16:19], s33 offen')
        else: a(f'buffer_store_dwordx2 v[{p}:{p+1}], v30, s[16:19], s22 offen')
    a('s_add_u32 s21, s21, 1\ns_cmp_lt_u32 s21, 3\ns_cbranch_scc1 K1_wt_task')
    a('K1_wt_done:')
    if PF and a.pf_later:
        a(f's_lshl_b32 s20, s3, 3\ns_add_u32 s20, s20, s{sW8}\ns_lshl_b32 s20, s20, 6\nv_add_u32 v2, s20, v0\nv_lshlrev_b32 v2, 7, v2')
        a('s_load_dwordx2 s[36:37], s[0:1], 56')
        pc_addr(a, 38, 'K2_base', 'K1_pc2')
        a('s_waitcnt lgkmcnt(0)')
        srd(a, 8, 36, 576*1152); srd(a, 12, 38, a.pf_later)
        a(f'buffer_load_dword v3, v2, s[8:11], 0 offen\nv_subrev_u32 v4, {5184*128}, v2\nbuffer_load_dword v5, v4, s[12:15], 0 offen\ns_waitcnt vmcnt(0)')
    if STAMP:
        a('s_waitcnt vmcnt(0)'); stamp(a, 3); stamp(a, 4); stamp_flush(a, 5, 90, VST)
    a('K1_end:\ns_endpgm')
```

```python
from common import *
import numpy as np
CH = 20480; LDS_X = 3*CH; LDS = LDS_X + 8192
NV = 168
sWv = 3
def _bf(x): return bf16(float(x))
def tab_F1():
    out = []
    for w in range(2):
        for j in range(4):
            for l in range(64):
                i, kh = l & 31, l >> 5
                c = 16*w + (i >> 1); ro = i & 1
                for jj in range(8):
                    a = 8*j + 4*kh + (jj >> 1); ri = jj & 1
                    th = 2*math.pi*a*c/32
                    v = (math.cos(th) if ri == ro else (math.sin(th) if ri == 1 else -math.sin(th)))
                    out.append(_bf(v))
    return np.array(out, np.uint16).tobytes()
def tab_CS():
    out = []
    for dt in range(2):
        for st in range(4):
            for cs in range(2):
                for l in range(64):
                    i, kh = l & 31, l >> 5
                    d = 32*dt + i
                    for jj in range(8):
                        b = 16*st + 8*(jj >> 2) + 4*kh + (jj & 3)
                        th = 2*math.pi*b*d/64
                        out.append(_bf(math.cos(th) if cs == 0 else math.sin(th)))
    return np.array(out, np.uint16).tobytes()
def tab_TW1():
    out = []
    for w in range(2):
        for mt in range(2):
            for R2 in range(8):
                for l in range(64):
                    i, h = l & 31, l >> 5
                    c = 16*w + (i >> 1)
                    for R in (2*R2, 2*R2+1):
                        g, r = R >> 2, R & 3
                        b = 32*mt + 8*g + 4*h + r
                        ph = 2*math.pi*b*c/2048
                        out += [math.cos(ph), math.sin(ph) if (i & 1) == 0 else -math.sin(ph)]
    return np.array(out, np.float32).tobytes()
def tab_TW2():
    out = []
    for w in range(2):
        for bt in range(2):
            for g in range(4):
                for l in range(64):
                    i, h = l & 31, l >> 5
                    b = 32*bt + i
                    for P in range(2):
                        c = 16*w + 4*g + 2*h + P
                        ph = 2*math.pi*b*c/2048
                        sc = 2.0/(2048*576) if WTB else 1.0
                        out += [sc*math.cos(ph), sc*math.sin(ph)]
    return np.array(out, np.float32).tobytes()
def tab_F4():
    out = []
    for nt in range(2):
        for st in range(4):
            w2, u = st >> 1, st & 1
            for l in range(64):
                i, kh = l & 31, l >> 5
                a = 16*nt + (i >> 1); ro = i & 1
                for jj in range(8):
                    q = jj >> 1; ri = jj & 1
                    c = 16*w2 + 4*(2*u + (q >> 1)) + 2*kh + (q & 1)
                    th = 2*math.pi*a*c/32
                    v = (math.cos(th) if ri == ro else (-math.sin(th) if ri == 1 else math.sin(th)))
                    out.append(_bf(v))
    return np.array(out, np.uint16).tobytes()
OF1, OCS, OTW1, OTW2, OF4 = 0, 8192, 8192+16384, 8192+16384+32768, 8192+16384+32768+16384
def tables():
    b = tab_F1() + tab_CS() + tab_TW1() + tab_TW2() + tab_F4()
    assert len(b) == OF4 + 8192
    return data_text('FTAB', b)
DPP = 'quad_perm:[1,0,3,2] row_mask:0xf bank_mask:0xf'

FUSE = False
FINEV = os.environ.get('FINE', 'a')
FINE = FINEV != '0'
F1E = bool(os.environ.get('F1E'))
def fft_wave(a):
    XA, F1, D, TW, PB, PS, CS, WA, WB, T = 8, 40, 56, 88, 8, 24, 88, 40, 152, 2
    def wreg(k): return (WA + 2*k) if k < 8 else (WB + 2*(k-8))
    a(f's_sub_u32 s4, s{sWv}, 8\ns_and_b32 s5, s4, 1\ns_lshr_b32 s4, s4, 1\ns_lshl_b32 s6, s2, 1\ns_add_u32 s6, s6, s4')
    a('s_cmp_ge_u32 s6, 289\ns_cbranch_scc1 K2_end')
    if os.environ.get('NOFFT'): a('s_branch K2_end')
    a('s_setprio %s' % os.environ.get('FFTPRIO', '0' if FINE else '3'))
    pc_addr(a, 24, 'FTAB', 'K2_pc1')
    a('s_waitcnt lgkmcnt(0)')
    srd(a, 8, 40, 288*8192, WS_XC); srd(a, 12, 40, 289*(8192 if WTB else 16384), WS_WT); srd(a, 16, 40, 576*4096, WS_ZC); srd(a, 20, 24, OF4+8192)
    a('s_cmp_eq_u32 s6, 288\ns_cselect_b32 s7, 0, s6\ns_lshl_b32 s28, s7, 13\ns_add_u32 s29, s28, 4096')
    a('v_and_b32 v1, 31, v0\nv_lshrrev_b32 v6, 5, v0\nv_lshlrev_b32 v7, 2, v1\nv_lshl_add_u32 v7, v6, 10, v7')
    for mt in range(2):
        for j in range(4):
            for q in range(4):
                off = 2048*j + 256*q + 128*mt
                a(f'buffer_load_dword v{XA+16*mt+4*j+q}, v7, s[8:11], s{28 if off < 4096 else 29} offen offset:{off & 4095}')
    a('v_lshlrev_b32 v160+0, 4, v0'.replace('v160+0', 'v168') if False else '')
    if not F1E: a('s_barrier')
    a('v_lshlrev_b32 v5, 4, v0')
    def tload(dst, off_expr_s, imm):
        a(f'buffer_load_dwordx4 v[{dst}:{dst+3}], v5, s[20:23], s{off_expr_s} offen offset:{imm}')
    a(f's_lshl_b32 s30, s5, 12\ns_add_u32 s30, s30, {OF1}')
    for j in range(4): tload(F1+4*j, 30, 1024*j)
    if F1E: a('s_barrier')
    for mt in range(2):
        for half in range(2):
            a(f's_mul_i32 s30, s5, 16384\ns_add_u32 s30, s30, {OTW1 + 8192*mt + 4096*half}')
            for k in range(4): tload(TW + 32*mt + 16*half + 4*k, 30, 1024*k)
    a('v_and_b32 v2, 1, v0\nv_cmp_eq_u32 vcc, 1, v2\nv_mov_b32 v3, 0x80008000\nv_mov_b32 v4, 0')
    a('s_nop 0\nv_cndmask_b32 v6, v4, v3, vcc\nv_cndmask_b32 v7, v3, v4, vcc')
    if WTB: a('v_mov_b32 v2, 0x80000000\nv_mov_b32 v3, 0\nv_cndmask_b32 v1, v2, v3, vcc\ns_mov_b32 s35, 0xffff0000')
    else: a('v_mov_b32 v2, -1.0\nv_mov_b32 v3, 1.0\nv_cndmask_b32 v1, v2, v3, vcc')
    stamp(a, 1, 92)
    a('s_waitcnt vmcnt(20)')
    a('s_cmp_eq_u32 s6, 0\ns_cbranch_scc1 K2f_sp0\ns_cmp_eq_u32 s6, 288\ns_cbranch_scc0 K2f_nosp')
    for k in range(32): a(f'v_lshrrev_b32 v{XA+k}, 16, v{XA+k}')
    a('s_branch K2f_nosp\nK2f_sp0:')
    for k in range(32): a(f'v_and_b32 v{XA+k}, 0xffff, v{XA+k}')
    a('K2f_nosp:')
    a('s_waitcnt vmcnt(16)\ns_nop 1')
    for mt in range(2):
        for j in range(4):
            c = '0' if j == 0 else f'v[{D+16*mt}:{D+16*mt+15}]'
            a(f'v_mfma_f32_32x32x16_bf16 v[{D+16*mt}:{D+16*mt+15}], v[{XA+16*mt+4*j}:{XA+16*mt+4*j+3}], v[{F1+4*j}:{F1+4*j+3}], {c}')
    a('s_barrier')
    a('s_waitcnt vmcnt(0)\ns_nop 7\ns_nop 3')
    def cmul_lane(dreg, creg, sreg, tdst):
        a(f'v_mul_f32 v{tdst}, v{dreg}, v{creg}\nv_fmac_f32_dpp v{tdst}, v{dreg}, v{sreg} {DPP}')
    for mt in range(2):
        if mt == 1 and FINEV in '1a': a('s_barrier')
        for R2 in range(8):
            tw = TW + 32*mt + 4*R2; d = D + 16*mt + 2*R2
            cmul_lane(d, tw, tw+1, T); cmul_lane(d+1, tw+2, tw+3, T+1)
            a(f'v_cvt_pk_bf16_f32 v{PB+8*mt+R2}, v{T}, v{T+1}')
    a('s_nop 1')
    for k in range(16): a(f'v_xor_b32_dpp v{PS+k}, v{PB+k}, v6 {DPP}')
    for dt in range(2):
        for half in range(2):
            a(f's_mov_b32 s30, {OCS + 8192*dt + 4096*half}')
            for k in range(4): tload(CS + 32*dt + 16*half + 4*k, 30, 1024*k)
    a('v_and_b32 v2, 31, v0\nv_lshrrev_b32 v2, 1, v2\ns_lshl_b32 s30, s5, 4\nv_add_u32 v2, s30, v2\nv_lshlrev_b32 v2, %d, v2\nv_lshrrev_b32 v3, 5, v0\nv_lshl_add_u32 v4, v3, %d, v2' % ((2, 9) if WTB else (3, 10)))
    def wload(dt):
        for g in range(4 if WTB else 0):
            a(f's_lshl_b32 s30, s6, 13\ns_add_u32 s30, s30, {4096*dt + 1024*g}')
            for r in range(4):
                a(f'buffer_load_dword v{wreg(4*g + r)+1}, v4, s[12:15], s30 offen offset:{128*r}')
        for g in range(0 if WTB else 4):
            a(f's_lshl_b32 s30, s6, 14\ns_add_u32 s30, s30, {8192*dt + 2048*g}')
            for r in range(4):
                k = 4*g + r
                a(f'buffer_load_dwordx2 v[{wreg(k)}:{wreg(k)+1}], v4, s[12:15], s30 offen offset:{256*r}')
    wload(0)
    stamp(a, 2, 92)
    a('s_barrier')
    a('s_waitcnt vmcnt(16)')
    for dt in range(2):
        first = True
        for st in range(4):
            for cs in range(2):
                src = (PB if cs == 0 else PS) + 4*st
                c = '0' if first else f'v[{D+16*dt}:{D+16*dt+15}]'; first = False
                f = CS + 32*dt + 8*st + 4*cs
                a(f'v_mfma_f32_32x32x16_bf16 v[{D+16*dt}:{D+16*dt+15}], v[{f}:{f+3}], v[{src}:{src+3}], {c}')
    if FINEV in '1b': a('s_barrier')
    a('s_waitcnt vmcnt(0)\ns_nop 7\ns_nop 3')
    def wmul(dt):
        for k in range(0, 16, 2):
            for e in range(2):
                wr = wreg(k+e); d = D + 16*dt + k + e
                if WTB: a(f'v_lshlrev_b32 v{wr}, 16, v{wr+1}\nv_bitop3_b32 v{wr+1}, v{wr+1}, s35, v1 bitop3:0x6a')
                else: a(f'v_mul_f32 v{wr+1}, v{wr+1}, v1')
                cmul_lane(d, wr, wr+1, T+e)
            a(f'v_cvt_pk_bf16_f32 v{PB+8*dt+(k>>1)}, v{T}, v{T+1}')
    wmul(0)
    wload(1)
    a('s_barrier')
    a('s_waitcnt vmcnt(0)')
    wmul(1)
    a('s_nop 1')
    for k in range(16): a(f'v_xor_b32_dpp v{PS+k}, v{PB+k}, v7 {DPP}')
    def t2reg(bt, g): return (WA if bt == 0 else WB) + 4*g
    for bt in range(2):
        a(f's_lshl_b32 s30, s5, 13\ns_add_u32 s30, s30, {OTW2 + 4096*bt}')
        for g in range(4): tload(t2reg(bt, g), 30, 1024*g)
    for bt in range(2):
        first = True
        for st in range(4):
            for cs in range(2):
                src = (PB if cs == 0 else PS) + 4*st
                c = '0' if first else f'v[{D+16*bt}:{D+16*bt+15}]'; first = False
                f = CS + 32*bt + 8*st + 4*cs
                a(f'v_mfma_f32_32x32x16_bf16 v[{D+16*bt}:{D+16*bt+15}], v[{src}:{src+3}], v[{f}:{f+3}], {c}')
    a('s_barrier')
    for nt in range(2):
        a(f's_mov_b32 s30, {OF4 + 4096*nt}')
        for st in range(4): tload(CS + 16*nt + 4*st, 30, 1024*st)
    a('s_waitcnt vmcnt(8)\ns_nop 7')
    if WTB:
        a('s_cmp_eq_u32 s6, 0\ns_cbranch_scc1 K2f_hs\ns_cmp_eq_u32 s6, 288\ns_cbranch_scc0 K2f_nhs\nK2f_hs:')
        for bt in range(2):
            for k in range(16): a(f'v_mul_f32 v{t2reg(bt, 0)+k}, 0.5, v{t2reg(bt, 0)+k}')
        a('K2f_nhs:')
    E = 8
    for bt in range(2):
        for g in range(4):
            for P in range(2):
                d = D + 16*bt + 4*g + 2*P; tw = t2reg(bt, g) + 2*P
                a(f'v_mul_f32 v{T}, v{d}, v{tw}\nv_mul_f32 v{T+1}, v{d+1}, v{tw}')
                a(f'v_fma_f32 v{T}, -v{d+1}, v{tw+1}, v{T}\nv_fma_f32 v{T+1}, v{d}, v{tw+1}, v{T+1}')
                a(f'v_cvt_pk_bf16_f32 v{E+8*bt+2*g+P}, v{T}, v{T+1}')
    a(f's_sub_u32 s30, s{sWv}, 8\ns_lshl_b32 s30, s30, 11\ns_add_u32 s30, s30, {LDS_X}\nv_add_u32 v2, s30, v5')
    a('s_cmp_eq_u32 s5, 0\ns_cbranch_scc1 K2f_w0')
    a('ds_write_b128 v2, v[8:11]\nds_write_b128 v2, v[12:15] offset:1024')
    for k in range(8): a(f'v_mov_b32 v{32+k}, v{16+k}')
    a('s_branch K2f_wj\nK2f_w0:')
    a('ds_write_b128 v2, v[16:19]\nds_write_b128 v2, v[20:23] offset:1024')
    for k in range(8): a(f'v_mov_b32 v{24+k}, v{8+k}')
    a('K2f_wj:')
    stamp(a, 3, 92)
    a('s_waitcnt lgkmcnt(0)\ns_barrier')
    a('v_xor_b32 v2, 2048, v2')
    a('s_cmp_eq_u32 s5, 0\ns_cbranch_scc1 K2f_r0')
    a('ds_read_b128 v[24:27], v2\nds_read_b128 v[28:31], v2 offset:1024\ns_branch K2f_rj\nK2f_r0:')
    a('ds_read_b128 v[32:35], v2\nds_read_b128 v[36:39], v2 offset:1024\nK2f_rj:')
    a('s_waitcnt vmcnt(0) lgkmcnt(0)')
    for nt in range(2):
        for st in range(4):
            c = '0' if st == 0 else f'v[{D+16*nt}:{D+16*nt+15}]'
            f = CS + 16*nt + 4*st
            a(f'v_mfma_f32_32x32x16_bf16 v[{D+16*nt}:{D+16*nt+15}], v[{24+4*st}:{24+4*st+3}], v[{f}:{f+3}], {c}')
    a('v_and_b32 v2, 31, v0\nv_lshrrev_b32 v3, 1, v2\nv_lshlrev_b32 v3, 7, v3\nv_lshrrev_b32 v4, 5, v0\nv_lshl_add_u32 v3, v4, 3, v3\nv_and_b32 v2, 1, v2')
    a('s_lshl_b32 s31, s5, 6\ns_add_u32 s31, s31, s28')
    a('s_cmp_eq_u32 s6, 0\ns_cbranch_scc1 K2f_st0\ns_cmp_eq_u32 s6, 288\ns_cbranch_scc1 K2f_st288')
    a('v_lshl_add_u32 v3, v2, 12, v3\ns_branch K2f_stj')
    a('K2f_st288:\nv_add_u32 v3, 4096, v3\nK2f_st0:\nv_cmp_eq_u32 vcc, 0, v2\ns_nop 1\ns_and_b64 exec, exec, vcc')
    a('K2f_stj:\ns_nop 7')
    for nt in range(2):
        for g in range(4):
            d = D + 16*nt + 4*g; p = 8 + 2*(4*nt+g)
            a(f'v_cvt_pk_bf16_f32 v{p}, v{d}, v{d+1}\nv_cvt_pk_bf16_f32 v{p+1}, v{d+2}, v{d+3}')
            a(f'buffer_store_dwordx2 v[{p}:{p+1}], v3, s[16:19], s31 offen offset:{2048*nt + 16*g}' + (' sc1' if FUSE else ''))
    if STAMP:
        a('s_mov_b64 exec, -1\ns_waitcnt vmcnt(0)\ns_lshl_b32 s26, s3, 6\nv_add_u32 v123, s26, v0'); stamp(a, 4, 92); stamp_flush(a, 5, 92)
    if FUSE: a('s_waitcnt vmcnt(0)')
    a('s_endpgm')

def attn_wave(a):
    Q1, Q2, S, P, O = 2, 6, [8, 24], 40, 48
    Kf, Vf = [64, 72], [80, 88]
    aK1, aK2, aV = [96, 99], [97, 100], [98, 101]
    T = 104
    if os.environ.get('ATTPRIO'): a('s_setprio %s' % os.environ['ATTPRIO'])
    if os.environ.get('NOXQ'): a(f's_lshr_b32 s4, s2, 2\ns_and_b32 s5, s2, 3\ns_lshl_b32 s5, s5, 3\ns_add_u32 s5, s5, s{sWv}')
    else:
        a(f's_and_b32 s4, s2, 7\ns_lshl_b32 s4, s4, 3\ns_lshr_b32 s5, s2, 5\ns_add_u32 s4, s4, s5\ns_lshr_b32 s5, s2, 3\ns_and_b32 s5, s5, 3\ns_lshl_b32 s5, s5, 3\ns_add_u32 s5, s5, s{sWv}')
    a('s_waitcnt lgkmcnt(0)')
    srd(a, 8, 40, NB_ACT, WS_Q); srd(a, 12, 40, 64*KVT, WS_KV); srd(a, 16, 40, NB_ACT, WS_O)
    srd(a, 28, 40, 256, WS_KMX)
    a('v_lshlrev_b32 v102, 4, v0\nv_lshlrev_b32 v116, 2, v0\nbuffer_load_dword v117, v116, s[28:31], 0 offen')
    a(f's_mul_i32 s20, s{sWv}, {KVT}')
    def dmap(n, g_s, l_s):
        if n == 2: a('s_mov_b32 exec_hi, 0')
        a(f's_add_u32 m0, s{l_s}, {1024*n}\ns_add_u32 s27, s{g_s}, {1024*n}\nbuffer_load_dwordx4 v102, s[12:15], s27 offen lds')
        if n == 2: a('s_mov_b32 exec_hi, -1')
    a(f'v_and_b32 v1, 31, v0\ns_lshl_b32 s6, s4, 5\nv_add_u32 v{T}, s6, v1\ns_movk_i32 s7, 1152\nv_mul_lo_u32 v{T}, v{T}, s7')
    a(f'v_lshrrev_b32 v{T+1}, 5, v0\nv_lshl_add_u32 v103, v{T+1}, 3, v{T}\ns_mul_i32 s7, s5, 36')
    a(f'buffer_load_dwordx2 v[{Q1}:{Q1+1}], v103, s[8:11], s7 offen\nbuffer_load_dwordx2 v[{Q1+2}:{Q1+3}], v103, s[8:11], s7 offen offset:16')
    a(f'buffer_load_dword v{Q2}, v{T}, s[8:11], s7 offen offset:32')
    a('s_mov_b32 s22, s20\ns_mov_b32 s23, s20')
    for n in range(3): dmap(n, 22, 23)
    a(f's_add_u32 s22, s20, {CH}\ns_add_u32 s23, s20, {CH}')
    for n in range(2): dmap(n, 22, 23)
    a(f'v_lshlrev_b32 v{aK1[0]}, 4, v0\nv_lshlrev_b32 v{aK2[0]}, 3, v1\nv_add_u32 v{aK2[0]}, 1024, v{aK2[0]}')
    a(f'v_mov_b32 v{T+2}, 19\nv_cmp_gt_u32 vcc, 19, v1\ns_nop 1\nv_cndmask_b32 v{T+2}, v{T+2}, v1, vcc')
    if False: a(f'v_subrev_u32 v{T+3}, 20, v1\nv_cmp_gt_u32 vcc, 8, v{T+3}\ns_nop 1\nv_cndmask_b32 v{T+2}, v{T+2}, 0, vcc'.replace(f'v_cndmask_b32 v{T+2}, v{T+2}, 0, vcc', f'v_mov_b32 v{T+3}, 0\nv_cndmask_b32 v{T+2}, v{T+2}, v{T+3}, vcc'))
    a(f'v_mul_u32_u24 v{T+3}, 20, v{T+1}\nv_add_u32 v{T+2}, v{T+2}, v{T+3}\nv_lshlrev_b32 v{T+2}, 4, v{T+2}\nv_add_u32 v{aV[0]}, 1280, v{T+2}')
    for r in (aK1, aK2, aV): a(f'v_add_u32 v{r[1]}, {CH}, v{r[0]}')
    for i in range(16): a(f'v_mov_b32 v{O+i}, 0')
    a('s_waitcnt vmcnt(2)')
    for ctl in ('row_shr:1', 'row_shr:2', 'row_shr:4', 'row_shr:8', 'row_bcast:15 row_mask:0xa', 'row_bcast:31 row_mask:0xc'):
        rm = '' if 'row_mask' in ctl else ' row_mask:0xf'
        a(f's_nop 1\nv_max_u32_dpp v117, v117, v117 {ctl}{rm} bank_mask:0xf')
    a('s_nop 1\nv_readlane_b32 s44, v117, 63')
    a(f'v_cmp_gt_u32 vcc, 32, v0\nv_mov_b32 v{T}, 0\ns_nop 0\nv_cndmask_b32 v{Q2}, v{T}, v{Q2}, vcc')
    a(f'v_dot2_f32_bf16 v{T}, v{Q1}, v{Q1}, v{T}')
    for r in (Q1+1, Q1+2, Q1+3, Q2): a(f's_nop 2\nv_dot2_f32_bf16 v{T}, v{r}, v{r}, v{T}')
    a(f's_nop 2\nv_mov_b32 v{T+1}, v{T}\ns_nop 1\nv_permlane32_swap_b32 v{T}, v{T+1}\nv_add_f32 v{T}, v{T}, v{T+1}')
    a(f'v_mul_f32 v{T}, s44, v{T}\nv_sqrt_f32 v{T}, v{T}\ns_nop 0\nv_mul_f32 v{T}, {f32bits(-(1+2**-6)):#x}, v{T}')
    a(f'v_mov_b32 v{T+1}, 0\nv_cvt_pk_bf16_f32 v{T}, v{T}, v{T+1}\nv_cndmask_b32 v{Q2+1}, v{T+1}, v{T}, vcc')
    stamp(a, 1, 92)
    a('s_barrier')
    stamp(a, 2, 92)
    def rdK(buf, areg, u):
        a(f'ds_read_b128 v[{Kf[buf]}:{Kf[buf]+3}], v{aK1[areg]} offset:{u*KVT}\nds_read_b64 v[{Kf[buf]+4}:{Kf[buf]+5}], v{aK2[areg]} offset:{u*KVT}')
    def rdV(buf, areg, u):
        a(f'ds_read_b128 v[{Vf[buf]}:{Vf[buf]+3}], v{aV[areg]} offset:{u*KVT}\nds_read_b128 v[{Vf[buf]+4}:{Vf[buf]+7}], v{aV[areg]} offset:{u*KVT+640}')
    def qk1(sb, kb): a(f'v_mfma_f32_32x32x16_bf16 v[{S[sb]}:{S[sb]+15}], v[{Kf[kb]}:{Kf[kb]+3}], v[{Q1}:{Q1+3}], 0')
    def qk2(sb, kb): a(f'v_mfma_f32_32x32x8bf16_1k v[{S[sb]}:{S[sb]+15}], v[{Kf[kb]+4}:{Kf[kb]+5}], v[{Q2}:{Q2+1}], v[{S[sb]}:{S[sb]+15}]')
    def rdK1(buf, areg, u): a(f'ds_read_b128 v[{Kf[buf]}:{Kf[buf]+3}], v{aK1[areg]} offset:{u*KVT}')
    def rdK2(buf, areg, u): a(f'ds_read_b64 v[{Kf[buf]+4}:{Kf[buf]+5}], v{aK2[areg]} offset:{u*KVT}')
    def rdV1(buf, areg, u): a(f'ds_read_b128 v[{Vf[buf]}:{Vf[buf]+3}], v{aV[areg]} offset:{u*KVT}')
    def rdV2(buf, areg, u): a(f'ds_read_b128 v[{Vf[buf]+4}:{Vf[buf]+7}], v{aV[areg]} offset:{u*KVT+640}')
    def pv(h, vb): a(f'v_mfma_f32_32x32x16_bf16 v[{O}:{O+15}], v[{Vf[vb]+4*h}:{Vf[vb]+4*h+3}], v[{P+4*h}:{P+4*h+3}], v[{O}:{O+15}]')
    rdK(0, 0, 0); rdK(1, 0, 1); rdV(0, 0, 0)
    for i in range(4): a(f'v_mov_b32 v{P+4+i}, 0\nv_mov_b32 v{Vf[1]+4+i}, 0')
    a('s_waitcnt lgkmcnt(4)'); qk1(0, 0); qk2(0, 0)
    a(f's_mov_b32 s24, 0\ns_mov_b32 s25, {2*CH}')
    a('s_nop 7\ns_nop 3')
    a('.p2align 6\nK2a_loop:')
    for u in range(8):
        b = u & 1; s = S[b]
        ex = lambda lo, hi: [a(f'{"v_mov_b32" if os.environ.get("NOEXP") else "v_exp_f32"} v{s+i}, v{s+i}') for i in range(lo, hi)]
        cv = lambda lo, hi: [a(f'v_cvt_pk_bf16_f32 v{P+i}, v{s+2*i}, v{s+2*i+1}') for i in range(lo, hi)]
        ka, ku = (0, u+2) if u + 2 < 8 else (1, u+2-8)
        va, vu = (0, u+1) if u + 1 < 8 else (1, 0)
        if u == 6:
            a('s_waitcnt vmcnt(0) lgkmcnt(0)\ns_barrier')
            a(f's_add_u32 s22, s22, {CH}\ns_add_u32 s23, s20, s25')
        else: a('s_waitcnt lgkmcnt(0)')
        qk1(1-b, 1-b)
        rdK1(b, ka, ku)
        if u in (6, 7, 0): dmap({6: 0, 7: 1, 0: 2}[u], 22, 23)
        ex(0, 5)
        pv(1, 1-b)
        rdK2(b, ka, ku)
        ex(5, 8); cv(0, 4)
        qk2(1-b, 1-b)
        rdV1(1-b, va, vu)
        ex(8, 12)
        pv(0, b)
        rdV2(1-b, va, vu)
        ex(12, 16); cv(4, 8)
    for r in (aK1, aK2, aV): a(f'v_mov_b32 v{r[0]}, v{r[1]}')
    for r, k in ((aK1, 0), (aK2, 1), (aV, 2)): a(f'v_add_u32 v{r[1]}, s25, v{T+8+k}')
    a(f's_add_u32 s25, s25, {CH}\ns_cmp_ge_u32 s25, {3*CH}\ns_cselect_b32 s25, 0, s25')
    a('s_add_u32 s24, s24, 1\ns_cmp_lt_u32 s24, 8\ns_cbranch_scc1 K2a_loop')
    a('s_nop 1'); pv(1, 1)
    a('s_waitcnt vmcnt(0) lgkmcnt(0)\ns_nop 7\ns_nop 7')
    stamp(a, 3, 92)
    a(f'v_mov_b32 v{T}, v{O+10}\nv_mov_b32 v{T+1}, v{O+10}\ns_nop 1\nv_permlane32_swap_b32 v{T}, v{T+1}')
    a(f's_mov_b32 s26, {f32bits(2.0**-80)}\nv_cmp_nle_f32 vcc, s26, v{T}\ns_nop 1\ns_nop 3\ns_cbranch_vccnz K2a_slow')
    a('K2a_fin:')
    a(f'v_rcp_f32 v{T}, v{T}\ns_nop 0')
    for i in range(10): a(f'v_mul_f32 v{O+i}, v{O+i}, v{T}')
    for i in range(5): a(f'v_cvt_pk_bf16_f32 v{P+i}, v{O+2*i}, v{O+2*i+1}')
    sc = ' sc1' if FUSE else ''
    a(f'buffer_store_dwordx2 v[{P}:{P+1}], v103, s[16:19], s7 offen{sc}\nbuffer_store_dwordx2 v[{P+2}:{P+3}], v103, s[16:19], s7 offen offset:16{sc}')
    a(f'v_cmp_gt_u32 vcc, 32, v0\ns_nop 1\ns_and_b64 exec, exec, vcc\nbuffer_store_dword v{P+4}, v103, s[16:19], s7 offen offset:32{sc}')
    if STAMP and not FUSE:
        a('s_mov_b64 exec, -1\ns_waitcnt vmcnt(0)'); stamp(a, 4, 92); stamp_flush(a, 5, 92)
    if FUSE: a('s_mov_b64 exec, -1\ns_branch K23_tail')
    else: a('s_endpgm')
    a('K2a_slow:')
    a(f'v_lshlrev_b32 v{T+4}, 4, v0\nv_lshlrev_b32 v{T+5}, 3, v1\nv_add_u32 v{T+5}, 1024, v{T+5}\nv_mov_b32 v{T+6}, v{T+10}')
    a(f'v_and_b32 v{Q2+1}, 0, v{Q2+1}\nv_mov_b32 v{T+7}, 0xff7fffff\ns_mov_b32 s26, 0')
    a('K2a_s1:')
    a(f'buffer_load_dwordx4 v[{Kf[0]}:{Kf[0]+3}], v{T+4}, s[12:15], s26 offen\nbuffer_load_dwordx2 v[{Kf[0]+4}:{Kf[0]+5}], v{T+5}, s[12:15], s26 offen\ns_waitcnt vmcnt(0)')
    qk1(0, 0); qk2(0, 0); a('s_nop 7\ns_nop 7')
    for i in range(16): a(f'v_max_f32 v{T+7}, v{T+7}, v{S[0]+i}')
    a(f's_add_u32 s26, s26, {KVT}\ns_cmp_lt_u32 s26, {64*KVT}\ns_cbranch_scc1 K2a_s1')
    a(f'v_mov_b32 v{T}, v{T+7}\ns_nop 1\nv_permlane32_swap_b32 v{T}, v{T+7}\nv_max_f32 v{T+7}, v{T+7}, v{T}')
    for i in range(16): a(f'v_mov_b32 v{O+i}, 0')
    a('s_mov_b32 s26, 0\nK2a_s2:')
    a(f'buffer_load_dwordx4 v[{Kf[0]}:{Kf[0]+3}], v{T+4}, s[12:15], s26 offen\nbuffer_load_dwordx2 v[{Kf[0]+4}:{Kf[0]+5}], v{T+5}, s[12:15], s26 offen')
    a(f'buffer_load_dwordx4 v[{Vf[0]}:{Vf[0]+3}], v{T+6}, s[12:15], s26 offen\nbuffer_load_dwordx4 v[{Vf[0]+4}:{Vf[0]+7}], v{T+6}, s[12:15], s26 offen offset:640\ns_waitcnt vmcnt(0)')
    qk1(0, 0); qk2(0, 0); a('s_nop 7\ns_nop 7')
    for i in range(16): a(f'v_sub_f32 v{S[0]+i}, v{S[0]+i}, v{T+7}\nv_exp_f32 v{S[0]+i}, v{S[0]+i}')
    a('s_nop 0')
    for i in range(8): a(f'v_cvt_pk_bf16_f32 v{P+i}, v{S[0]+2*i}, v{S[0]+2*i+1}')
    a('s_nop 1')
    a(f'v_mfma_f32_32x32x16_bf16 v[{O}:{O+15}], v[{Vf[0]}:{Vf[0]+3}], v[{P}:{P+3}], v[{O}:{O+15}]')
    a(f'v_mfma_f32_32x32x16_bf16 v[{O}:{O+15}], v[{Vf[0]+4}:{Vf[0]+7}], v[{P+4}:{P+7}], v[{O}:{O+15}]')
    a(f's_add_u32 s26, s26, {KVT}\ns_cmp_lt_u32 s26, {64*KVT}\ns_cbranch_scc1 K2a_s2')
    a('s_nop 7\ns_nop 7')
    a(f'v_mov_b32 v{T}, v{O+10}\nv_mov_b32 v{T+1}, v{O+10}\ns_nop 1\nv_permlane32_swap_b32 v{T}, v{T+1}\ns_branch K2a_fin')

def k2(a):
    a('K2_base:')
    a('s_cmp_ge_u32 s2, 256\ns_cbranch_scc1 K2_end')
    a('s_load_dwordx2 s[40:41], s[0:1], 80')
    a(f'v_lshrrev_b32 v1, 6, v0\ns_nop 0\nv_readfirstlane_b32 s{sWv}, v1\nv_and_b32 v0, 63, v0\ns_nop 2')
    if STAMP: a('v_lshl_add_u32 v123, v1, 6, v0')
    stamp(a, 0, 92)
    a(f's_cmp_ge_u32 s{sWv}, 8\ns_cbranch_scc1 K2_fft')
    b = Asm(); attn_wave(b)
    txt = b.text().replace("    v_mov_b32 v48, 0\n", "    v_mov_b32 v112, v96\n    v_mov_b32 v113, v97\n    v_mov_b32 v114, v98\n    v_mov_b32 v48, 0\n", 1)
    a.l.append(txt.rstrip('\n'))
    a('K2_fft:')
    fft_wave(a)
    a('K2_end:\ns_endpgm')
    if FUSE:
        import k3
        a('K23_tail:')
        ST5[0] = True
        if STAMP: a('s_lshl_b32 s26, s3, 6\nv_add_u32 v123, s26, v0')
        stamp(a, 0)
        a('s_load_dwordx2 s[42:43], s[0:1], 72')
        a('s_waitcnt vmcnt(0)\ns_barrier')
        stamp(a, 5)
        a('s_waitcnt lgkmcnt(0)')
        srd(a, 28, 42, 256)
        a(f's_cmp_lg_u32 s{sWv}, 0\ns_cbranch_scc1 K23_np')
        a('v_mov_b32 v2, 1\nv_mov_b32 v3, s2\ns_mov_b32 exec_hi, 0\ns_mov_b32 exec_lo, 1\nbuffer_store_byte v2, v3, s[28:31], 0 offen sc1\ns_mov_b64 exec, -1')
        a('s_cmp_ge_u32 s2, 192\ns_cbranch_scc1 K23_np')
        a('v_lshlrev_b32 v3, 2, v0\ns_mov_b32 s26, 0')
        a('K23_poll:\nbuffer_load_dword v2, v3, s[28:31], 0 offen sc1\ns_add_u32 s26, s26, 1\ns_waitcnt vmcnt(0)')
        a('v_cmp_ne_u32 vcc, 0x01010101, v2\ns_cmp_ge_u32 s26, 0x8000\ns_cbranch_scc1 K23_got\ns_nop 1\ns_cbranch_vccnz K23_poll')
        a('K23_got:')
        stamp(a, 6)
        a('buffer_inv sc1\ns_waitcnt vmcnt(0)')
        stamp(a, 7)
        a('K23_np:\ns_cmp_ge_u32 s2, 192\ns_cbranch_scc1 K2_end2')
        a('s_barrier')
        k3.k3(a, fused=True)
        a('K2_end2:\ns_endpgm')
```

```python
from common import *
import numpy as np
CH = 20480; LDS_X = 3*CH; LDS = LDS_X + 8192
NV = 168
sWv = 3
def _bf(x): return bf16(float(x))
def tab_F1():
    out = []
    for w in range(2):
        for j in range(4):
            for l in range(64):
                i, kh = l & 31, l >> 5
                c = 16*w + (i >> 1); ro = i & 1
                for jj in range(8):
                    a = 8*j + 4*kh + (jj >> 1); ri = jj & 1
                    th = 2*math.pi*a*c/32
                    v = (math.cos(th) if ri == ro else (math.sin(th) if ri == 1 else -math.sin(th)))
                    out.append(_bf(v))
    return np.array(out, np.uint16).tobytes()
def tab_CS():
    out = []
    for dt in range(2):
        for st in range(4):
            for cs in range(2):
                for l in range(64):
                    i, kh = l & 31, l >> 5
                    d = 32*dt + i
                    for jj in range(8):
                        b = 16*st + 8*(jj >> 2) + 4*kh + (jj & 3)
                        th = 2*math.pi*b*d/64
                        out.append(_bf(math.cos(th) if cs == 0 else math.sin(th)))
    return np.array(out, np.uint16).tobytes()
def tab_TW1():
    out = []
    for w in range(2):
        for mt in range(2):
            for R2 in range(8):
                for l in range(64):
                    i, h = l & 31, l >> 5
                    c = 16*w + (i >> 1)
                    for R in (2*R2, 2*R2+1):
                        g, r = R >> 2, R & 3
                        b = 32*mt + 8*g + 4*h + r
                        ph = 2*math.pi*b*c/2048
                        out += [math.cos(ph), math.sin(ph) if (i & 1) == 0 else -math.sin(ph)]
    return np.array(out, np.float32).tobytes()
def tab_TW2():
    out = []
    for w in range(2):
        for bt in range(2):
            for g in range(4):
                for l in range(64):
                    i, h = l & 31, l >> 5
                    b = 32*bt + i
                    for P in range(2):
                        c = 16*w + 4*g + 2*h + P
                        ph = 2*math.pi*b*c/2048
                        sc = 2.0/(2048*576) if WTB else 1.0
                        out += [sc*math.cos(ph), sc*math.sin(ph)]
    return np.array(out, np.float32).tobytes()
def tab_F4():
    out = []
    for nt in range(2):
        for st in range(4):
            w2, u = st >> 1, st & 1
            for l in range(64):
                i, kh = l & 31, l >> 5
                a = 16*nt + (i >> 1); ro = i & 1
                for jj in range(8):
                    q = jj >> 1; ri = jj & 1
                    c = 16*w2 + 4*(2*u + (q >> 1)) + 2*kh + (q & 1)
                    th = 2*math.pi*a*c/32
                    v = (math.cos(th) if ri == ro else (-math.sin(th) if ri == 1 else math.sin(th)))
                    out.append(_bf(v))
    return np.array(out, np.uint16).tobytes()
OF1, OCS, OTW1, OTW2, OF4 = 0, 8192, 8192+16384, 8192+16384+32768, 8192+16384+32768+16384
def tables():
    b = tab_F1() + tab_CS() + tab_TW1() + tab_TW2() + tab_F4()
    assert len(b) == OF4 + 8192
    return data_text('FTAB', b)
DPP = 'quad_perm:[1,0,3,2] row_mask:0xf bank_mask:0xf'

FUSE = False
FINEV = os.environ.get('FINE', 'a')
FINE = FINEV != '0'
F1E = bool(os.environ.get('F1E'))
def fft_wave(a):
    XA, F1, D, TW, PB, PS, CS, WA, WB, T = 8, 40, 56, 88, 8, 24, 88, 40, 152, 2
    def wreg(k): return (WA + 2*k) if k < 8 else (WB + 2*(k-8))
    a(f's_sub_u32 s4, s{sWv}, 8\ns_and_b32 s5, s4, 1\ns_lshr_b32 s4, s4, 1\ns_lshl_b32 s6, s2, 1\ns_add_u32 s6, s6, s4')
    a('s_cmp_ge_u32 s6, 289\ns_cbranch_scc1 K2_end')
    if os.environ.get('NOFFT'): a('s_branch K2_end')
    a('s_setprio %s' % os.environ.get('FFTPRIO', '0' if FINE else '3'))
    pc_addr(a, 24, 'FTAB', 'K2_pc1')
    a('s_waitcnt lgkmcnt(0)')
    srd(a, 8, 40, 288*8192, WS_XC); srd(a, 12, 40, 289*(8192 if WTB else 16384), WS_WT); srd(a, 16, 40, 576*4096, WS_ZC); srd(a, 20, 24, OF4+8192)
    a('s_cmp_eq_u32 s6, 288\ns_cselect_b32 s7, 0, s6\ns_lshl_b32 s28, s7, 13\ns_add_u32 s29, s28, 4096')
    a('v_and_b32 v1, 31, v0\nv_lshrrev_b32 v6, 5, v0\nv_lshlrev_b32 v7, 2, v1\nv_lshl_add_u32 v7, v6, 10, v7')
    for mt in range(2):
        for j in range(4):
            for q in range(4):
                off = 2048*j + 256*q + 128*mt
                a(f'buffer_load_dword v{XA+16*mt+4*j+q}, v7, s[8:11], s{28 if off < 4096 else 29} offen offset:{off & 4095}')
    a('v_lshlrev_b32 v160+0, 4, v0'.replace('v160+0', 'v168') if False else '')
    if not F1E: a('s_barrier')
    a('v_lshlrev_b32 v5, 4, v0')
    def tload(dst, off_expr_s, imm):
        a(f'buffer_load_dwordx4 v[{dst}:{dst+3}], v5, s[20:23], s{off_expr_s} offen offset:{imm}')
    a(f's_lshl_b32 s30, s5, 12\ns_add_u32 s30, s30, {OF1}')
    for j in range(4): tload(F1+4*j, 30, 1024*j)
    if F1E: a('s_barrier')
    for mt in range(2):
        for half in range(2):
            a(f's_mul_i32 s30, s5, 16384\ns_add_u32 s30, s30, {OTW1 + 8192*mt + 4096*half}')
            for k in range(4): tload(TW + 32*mt + 16*half + 4*k, 30, 1024*k)
    a('v_and_b32 v2, 1, v0\nv_cmp_eq_u32 vcc, 1, v2\nv_mov_b32 v3, 0x80008000\nv_mov_b32 v4, 0')
    a('s_nop 0\nv_cndmask_b32 v6, v4, v3, vcc\nv_cndmask_b32 v7, v3, v4, vcc')
    if WTB: a('v_mov_b32 v2, 0x80000000\nv_mov_b32 v3, 0\nv_cndmask_b32 v1, v2, v3, vcc\ns_mov_b32 s35, 0xffff0000')
    else: a('v_mov_b32 v2, -1.0\nv_mov_b32 v3, 1.0\nv_cndmask_b32 v1, v2, v3, vcc')
    stamp(a, 1, 92)
    a('s_waitcnt vmcnt(20)')
    a('s_cmp_eq_u32 s6, 0\ns_cbranch_scc1 K2f_sp0\ns_cmp_eq_u32 s6, 288\ns_cbranch_scc0 K2f_nosp')
    for k in range(32): a(f'v_lshrrev_b32 v{XA+k}, 16, v{XA+k}')
    a('s_branch K2f_nosp\nK2f_sp0:')
    for k in range(32): a(f'v_and_b32 v{XA+k}, 0xffff, v{XA+k}')
    a('K2f_nosp:')
    a('s_waitcnt vmcnt(16)\ns_nop 1')
    for mt in range(2):
        for j in range(4):
            c = '0' if j == 0 else f'v[{D+16*mt}:{D+16*mt+15}]'
            a(f'v_mfma_f32_32x32x16_bf16 v[{D+16*mt}:{D+16*mt+15}], v[{XA+16*mt+4*j}:{XA+16*mt+4*j+3}], v[{F1+4*j}:{F1+4*j+3}], {c}')
    a('s_barrier')
    a('s_waitcnt vmcnt(0)\ns_nop 7\ns_nop 3')
    def cmul_lane(dreg, creg, sreg, tdst):
        a(f'v_mul_f32 v{tdst}, v{dreg}, v{creg}\nv_fmac_f32_dpp v{tdst}, v{dreg}, v{sreg} {DPP}')
    for mt in range(2):
        if mt == 1 and FINEV in '1a': a('s_barrier')
        for R2 in range(8):
            tw = TW + 32*mt + 4*R2; d = D + 16*mt + 2*R2
            cmul_lane(d, tw, tw+1, T); cmul_lane(d+1, tw+2, tw+3, T+1)
            a(f'v_cvt_pk_bf16_f32 v{PB+8*mt+R2}, v{T}, v{T+1}')
    a('s_nop 1')
    for k in range(16): a(f'v_xor_b32_dpp v{PS+k}, v{PB+k}, v6 {DPP}')
    for dt in range(2):
        for half in range(2):
            a(f's_mov_b32 s30, {OCS + 8192*dt + 4096*half}')
            for k in range(4): tload(CS + 32*dt + 16*half + 4*k, 30, 1024*k)
    a('v_and_b32 v2, 31, v0\nv_lshrrev_b32 v2, 1, v2\ns_lshl_b32 s30, s5, 4\nv_add_u32 v2, s30, v2\nv_lshlrev_b32 v2, %d, v2\nv_lshrrev_b32 v3, 5, v0\nv_lshl_add_u32 v4, v3, %d, v2' % ((2, 9) if WTB else (3, 10)))
    def wload(dt):
        for g in range(4 if WTB else 0):
            a(f's_lshl_b32 s30, s6, 13\ns_add_u32 s30, s30, {4096*dt + 1024*g}')
            for r in range(4):
                a(f'buffer_load_dword v{wreg(4*g + r)+1}, v4, s[12:15], s30 offen offset:{128*r}')
        for g in range(0 if WTB else 4):
            a(f's_lshl_b32 s30, s6, 14\ns_add_u32 s30, s30, {8192*dt + 2048*g}')
            for r in range(4):
                k = 4*g + r
                a(f'buffer_load_dwordx2 v[{wreg(k)}:{wreg(k)+1}], v4, s[12:15], s30 offen offset:{256*r}')
    wload(0)
    stamp(a, 2, 92)
    a('s_barrier')
    a('s_waitcnt vmcnt(16)')
    for dt in range(2):
        first = True
        for st in range(4):
            for cs in range(2):
                src = (PB if cs == 0 else PS) + 4*st
                c = '0' if first else f'v[{D+16*dt}:{D+16*dt+15}]'; first = False
                f = CS + 32*dt + 8*st + 4*cs
                a(f'v_mfma_f32_32x32x16_bf16 v[{D+16*dt}:{D+16*dt+15}], v[{f}:{f+3}], v[{src}:{src+3}], {c}')
    if FINEV in '1b': a('s_barrier')
    a('s_waitcnt vmcnt(0)\ns_nop 7\ns_nop 3')
    def wmul(dt):
        for k in range(0, 16, 2):
            for e in range(2):
                wr = wreg(k+e); d = D + 16*dt + k + e
                if WTB: a(f'v_lshlrev_b32 v{wr}, 16, v{wr+1}\nv_bitop3_b32 v{wr+1}, v{wr+1}, s35, v1 bitop3:0x6a')
                else: a(f'v_mul_f32 v{wr+1}, v{wr+1}, v1')
                cmul_lane(d, wr, wr+1, T+e)
            a(f'v_cvt_pk_bf16_f32 v{PB+8*dt+(k>>1)}, v{T}, v{T+1}')
    wmul(0)
    wload(1)
    a('s_barrier')
    a('s_waitcnt vmcnt(0)')
    wmul(1)
    a('s_nop 1')
    for k in range(16): a(f'v_xor_b32_dpp v{PS+k}, v{PB+k}, v7 {DPP}')
    def t2reg(bt, g): return (WA if bt == 0 else WB) + 4*g
    for bt in range(2):
        a(f's_lshl_b32 s30, s5, 13\ns_add_u32 s30, s30, {OTW2 + 4096*bt}')
        for g in range(4): tload(t2reg(bt, g), 30, 1024*g)
    for bt in range(2):
        first = True
        for st in range(4):
            for cs in range(2):
                src = (PB if cs == 0 else PS) + 4*st
                c = '0' if first else f'v[{D+16*bt}:{D+16*bt+15}]'; first = False
                f = CS + 32*bt + 8*st + 4*cs
                a(f'v_mfma_f32_32x32x16_bf16 v[{D+16*bt}:{D+16*bt+15}], v[{src}:{src+3}], v[{f}:{f+3}], {c}')
    a('s_barrier')
    for nt in range(2):
        a(f's_mov_b32 s30, {OF4 + 4096*nt}')
        for st in range(4): tload(CS + 16*nt + 4*st, 30, 1024*st)
    a('s_waitcnt vmcnt(8)\ns_nop 7')
    if WTB:
        a('s_cmp_eq_u32 s6, 0\ns_cbranch_scc1 K2f_hs\ns_cmp_eq_u32 s6, 288\ns_cbranch_scc0 K2f_nhs\nK2f_hs:')
        for bt in range(2):
            for k in range(16): a(f'v_mul_f32 v{t2reg(bt, 0)+k}, 0.5, v{t2reg(bt, 0)+k}')
        a('K2f_nhs:')
    E = 8
    for bt in range(2):
        for g in range(4):
            for P in range(2):
                d = D + 16*bt + 4*g + 2*P; tw = t2reg(bt, g) + 2*P
                a(f'v_mul_f32 v{T}, v{d}, v{tw}\nv_mul_f32 v{T+1}, v{d+1}, v{tw}')
                a(f'v_fma_f32 v{T}, -v{d+1}, v{tw+1}, v{T}\nv_fma_f32 v{T+1}, v{d}, v{tw+1}, v{T+1}')
                a(f'v_cvt_pk_bf16_f32 v{E+8*bt+2*g+P}, v{T}, v{T+1}')
    a(f's_sub_u32 s30, s{sWv}, 8\ns_lshl_b32 s30, s30, 11\ns_add_u32 s30, s30, {LDS_X}\nv_add_u32 v2, s30, v5')
    a('s_cmp_eq_u32 s5, 0\ns_cbranch_scc1 K2f_w0')
    a('ds_write_b128 v2, v[8:11]\nds_write_b128 v2, v[12:15] offset:1024')
    for k in range(8): a(f'v_mov_b32 v{32+k}, v{16+k}')
    a('s_branch K2f_wj\nK2f_w0:')
    a('ds_write_b128 v2, v[16:19]\nds_write_b128 v2, v[20:23] offset:1024')
    for k in range(8): a(f'v_mov_b32 v{24+k}, v{8+k}')
    a('K2f_wj:')
    stamp(a, 3, 92)
    a('s_waitcnt lgkmcnt(0)\ns_barrier')
    a('v_xor_b32 v2, 2048, v2')
    a('s_cmp_eq_u32 s5, 0\ns_cbranch_scc1 K2f_r0')
    a('ds_read_b128 v[24:27], v2\nds_read_b128 v[28:31], v2 offset:1024\ns_branch K2f_rj\nK2f_r0:')
    a('ds_read_b128 v[32:35], v2\nds_read_b128 v[36:39], v2 offset:1024\nK2f_rj:')
    a('s_waitcnt vmcnt(0) lgkmcnt(0)')
    for nt in range(2):
        for st in range(4):
            c = '0' if st == 0 else f'v[{D+16*nt}:{D+16*nt+15}]'
            f = CS + 16*nt + 4*st
            a(f'v_mfma_f32_32x32x16_bf16 v[{D+16*nt}:{D+16*nt+15}], v[{24+4*st}:{24+4*st+3}], v[{f}:{f+3}], {c}')
    a('v_and_b32 v2, 31, v0\nv_lshrrev_b32 v3, 1, v2\nv_lshlrev_b32 v3, 7, v3\nv_lshrrev_b32 v4, 5, v0\nv_lshl_add_u32 v3, v4, 3, v3\nv_and_b32 v2, 1, v2')
    a('s_lshl_b32 s31, s5, 6\ns_add_u32 s31, s31, s28')
    a('s_cmp_eq_u32 s6, 0\ns_cbranch_scc1 K2f_st0\ns_cmp_eq_u32 s6, 288\ns_cbranch_scc1 K2f_st288')
    a('v_lshl_add_u32 v3, v2, 12, v3\ns_branch K2f_stj')
    a('K2f_st288:\nv_add_u32 v3, 4096, v3\nK2f_st0:\nv_cmp_eq_u32 vcc, 0, v2\ns_nop 1\ns_and_b64 exec, exec, vcc')
    a('K2f_stj:\ns_nop 7')
    for nt in range(2):
        for g in range(4):
            d = D + 16*nt + 4*g; p = 8 + 2*(4*nt+g)
            a(f'v_cvt_pk_bf16_f32 v{p}, v{d}, v{d+1}\nv_cvt_pk_bf16_f32 v{p+1}, v{d+2}, v{d+3}')
            a(f'buffer_store_dwordx2 v[{p}:{p+1}], v3, s[16:19], s31 offen offset:{2048*nt + 16*g}' + (' sc1' if FUSE else ''))
    if STAMP:
        a('s_mov_b64 exec, -1\ns_waitcnt vmcnt(0)\ns_lshl_b32 s26, s3, 6\nv_add_u32 v123, s26, v0'); stamp(a, 4, 92); stamp_flush(a, 5, 92)
    if FUSE: a('s_waitcnt vmcnt(0)')
    a('s_endpgm')

def attn_wave(a):
    Q1, Q2, S, P, O = 2, 6, [8, 24], 40, 48
    Kf, Vf = [64, 72], [80, 88]
    aK1, aK2, aV = [96, 99], [97, 100], [98, 101]
    T = 104
    if os.environ.get('ATTPRIO'): a('s_setprio %s' % os.environ['ATTPRIO'])
    if os.environ.get('ASYM'): a(f's_cmp_ge_u32 s{sWv}, 4\ns_cbranch_scc1 K2a_lp\ns_setprio %s\nK2a_lp:' % os.environ['ASYM'])
    if os.environ.get('NOXQ'): a(f's_lshr_b32 s4, s2, 2\ns_and_b32 s5, s2, 3\ns_lshl_b32 s5, s5, 3\ns_add_u32 s5, s5, s{sWv}')
    else:
        a(f's_and_b32 s4, s2, 7\ns_lshl_b32 s4, s4, 3\ns_lshr_b32 s5, s2, 5\ns_add_u32 s4, s4, s5\ns_lshr_b32 s5, s2, 3\ns_and_b32 s5, s5, 3\ns_lshl_b32 s5, s5, 3\ns_add_u32 s5, s5, s{sWv}')
    a('s_waitcnt lgkmcnt(0)')
    srd(a, 8, 40, NB_ACT, WS_Q); srd(a, 12, 40, 64*KVT, WS_KV); srd(a, 16, 40, NB_ACT, WS_O)
    srd(a, 28, 40, 256, WS_KMX)
    a('v_lshlrev_b32 v102, 4, v0\nv_lshlrev_b32 v116, 2, v0\nbuffer_load_dword v117, v116, s[28:31], 0 offen')
    a(f's_mul_i32 s20, s{sWv}, {KVT}')
    def dmap(n, g_s, l_s):
        if n == 2: a('s_mov_b32 exec_hi, 0')
        a(f's_add_u32 m0, s{l_s}, {1024*n}\ns_add_u32 s27, s{g_s}, {1024*n}\nbuffer_load_dwordx4 v102, s[12:15], s27 offen lds')
        if n == 2: a('s_mov_b32 exec_hi, -1')
    a(f'v_and_b32 v1, 31, v0\ns_lshl_b32 s6, s4, 5\nv_add_u32 v{T}, s6, v1\ns_movk_i32 s7, 1152\nv_mul_lo_u32 v{T}, v{T}, s7')
    a(f'v_lshrrev_b32 v{T+1}, 5, v0\nv_lshl_add_u32 v103, v{T+1}, 3, v{T}\ns_mul_i32 s7, s5, 36')
    a(f'buffer_load_dwordx2 v[{Q1}:{Q1+1}], v103, s[8:11], s7 offen\nbuffer_load_dwordx2 v[{Q1+2}:{Q1+3}], v103, s[8:11], s7 offen offset:16')
    a(f'buffer_load_dword v{Q2}, v{T}, s[8:11], s7 offen offset:32')
    a('s_mov_b32 s22, s20\ns_mov_b32 s23, s20')
    for n in range(3): dmap(n, 22, 23)
    a(f's_add_u32 s22, s20, {CH}\ns_add_u32 s23, s20, {CH}')
    for n in range(2): dmap(n, 22, 23)
    a(f'v_lshlrev_b32 v{aK1[0]}, 4, v0\nv_lshlrev_b32 v{aK2[0]}, 3, v1\nv_add_u32 v{aK2[0]}, 1024, v{aK2[0]}')
    a(f'v_mov_b32 v{T+2}, 19\nv_cmp_gt_u32 vcc, 19, v1\ns_nop 1\nv_cndmask_b32 v{T+2}, v{T+2}, v1, vcc')
    if False: a(f'v_subrev_u32 v{T+3}, 20, v1\nv_cmp_gt_u32 vcc, 8, v{T+3}\ns_nop 1\nv_cndmask_b32 v{T+2}, v{T+2}, 0, vcc'.replace(f'v_cndmask_b32 v{T+2}, v{T+2}, 0, vcc', f'v_mov_b32 v{T+3}, 0\nv_cndmask_b32 v{T+2}, v{T+2}, v{T+3}, vcc'))
    a(f'v_mul_u32_u24 v{T+3}, 20, v{T+1}\nv_add_u32 v{T+2}, v{T+2}, v{T+3}\nv_lshlrev_b32 v{T+2}, 4, v{T+2}\nv_add_u32 v{aV[0]}, 1280, v{T+2}')
    for r in (aK1, aK2, aV): a(f'v_add_u32 v{r[1]}, {CH}, v{r[0]}')
    for i in range(16): a(f'v_mov_b32 v{O+i}, 0')
    EARLYW = os.environ.get('EARLYW', '0') == '1'
    a('s_waitcnt vmcnt(8)' if EARLYW else 's_waitcnt vmcnt(2)')
    for ctl in ('row_shr:1', 'row_shr:2', 'row_shr:4', 'row_shr:8', 'row_bcast:15 row_mask:0xa', 'row_bcast:31 row_mask:0xc'):
        rm = '' if 'row_mask' in ctl else ' row_mask:0xf'
        a(f's_nop 1\nv_max_u32_dpp v117, v117, v117 {ctl}{rm} bank_mask:0xf')
    a('s_nop 1\nv_readlane_b32 s44, v117, 63')
    if EARLYW: a('s_waitcnt vmcnt(5)')
    a(f'v_cmp_gt_u32 vcc, 32, v0\nv_mov_b32 v{T}, 0\ns_nop 0\nv_cndmask_b32 v{Q2}, v{T}, v{Q2}, vcc')
    a(f'v_dot2_f32_bf16 v{T}, v{Q1}, v{Q1}, v{T}')
    for r in (Q1+1, Q1+2, Q1+3, Q2): a(f's_nop 2\nv_dot2_f32_bf16 v{T}, v{r}, v{r}, v{T}')
    a(f's_nop 2\nv_mov_b32 v{T+1}, v{T}\ns_nop 1\nv_permlane32_swap_b32 v{T}, v{T+1}\nv_add_f32 v{T}, v{T}, v{T+1}')
    a(f'v_mul_f32 v{T}, s44, v{T}\nv_sqrt_f32 v{T}, v{T}\ns_nop 0\nv_mul_f32 v{T}, {f32bits(-(1+2**-6)):#x}, v{T}')
    a(f'v_mov_b32 v{T+1}, 0\nv_cvt_pk_bf16_f32 v{T}, v{T}, v{T+1}\nv_cndmask_b32 v{Q2+1}, v{T+1}, v{T}, vcc')
    if EARLYW: a('s_waitcnt vmcnt(2)')
    stamp(a, 1, 92)
    a('s_barrier')
    stamp(a, 2, 92)
    def rdK(buf, areg, u):
        a(f'ds_read_b128 v[{Kf[buf]}:{Kf[buf]+3}], v{aK1[areg]} offset:{u*KVT}\nds_read_b64 v[{Kf[buf]+4}:{Kf[buf]+5}], v{aK2[areg]} offset:{u*KVT}')
    def rdV(buf, areg, u):
        a(f'ds_read_b128 v[{Vf[buf]}:{Vf[buf]+3}], v{aV[areg]} offset:{u*KVT}\nds_read_b128 v[{Vf[buf]+4}:{Vf[buf]+7}], v{aV[areg]} offset:{u*KVT+640}')
    def qk1(sb, kb): a(f'v_mfma_f32_32x32x16_bf16 v[{S[sb]}:{S[sb]+15}], v[{Kf[kb]}:{Kf[kb]+3}], v[{Q1}:{Q1+3}], 0')
    def qk2(sb, kb): a(f'v_mfma_f32_32x32x8bf16_1k v[{S[sb]}:{S[sb]+15}], v[{Kf[kb]+4}:{Kf[kb]+5}], v[{Q2}:{Q2+1}], v[{S[sb]}:{S[sb]+15}]')
    def rdK1(buf, areg, u): a(f'ds_read_b128 v[{Kf[buf]}:{Kf[buf]+3}], v{aK1[areg]} offset:{u*KVT}')
    def rdK2(buf, areg, u): a(f'ds_read_b64 v[{Kf[buf]+4}:{Kf[buf]+5}], v{aK2[areg]} offset:{u*KVT}')
    def rdV1(buf, areg, u): a(f'ds_read_b128 v[{Vf[buf]}:{Vf[buf]+3}], v{aV[areg]} offset:{u*KVT}')
    def rdV2(buf, areg, u): a(f'ds_read_b128 v[{Vf[buf]+4}:{Vf[buf]+7}], v{aV[areg]} offset:{u*KVT+640}')
    def pv(h, vb): a(f'v_mfma_f32_32x32x16_bf16 v[{O}:{O+15}], v[{Vf[vb]+4*h}:{Vf[vb]+4*h+3}], v[{P+4*h}:{P+4*h+3}], v[{O}:{O+15}]')
    rdK(0, 0, 0); rdK(1, 0, 1); rdV(0, 0, 0)
    for i in range(4): a(f'v_mov_b32 v{P+4+i}, 0\nv_mov_b32 v{Vf[1]+4+i}, 0')
    a('s_waitcnt lgkmcnt(4)'); qk1(0, 0); qk2(0, 0)
    a(f's_mov_b32 s24, 0\ns_mov_b32 s25, {2*CH}')
    a('s_nop 7\ns_nop 3')
    FW = os.environ.get('FW', '1') == '1'
    a('.p2align 6\nK2a_loop:')
    for u in range(8):
        b = u & 1; s = S[b]
        ex = lambda lo, hi: [a(f'{"v_mov_b32" if os.environ.get("NOEXP") else "v_exp_f32"} v{s+i}, v{s+i}') for i in range(lo, hi)]
        cv = lambda lo, hi: [a(f'v_cvt_pk_bf16_f32 v{P+i}, v{s+2*i}, v{s+2*i+1}') for i in range(lo, hi)]
        ka, ku = (0, u+2) if u + 2 < 8 else (1, u+2-8)
        va, vu = (0, u+1) if u + 1 < 8 else (1, 0)
        if u == 6:
            a('s_waitcnt vmcnt(0) lgkmcnt(0)\ns_barrier')
            a(f's_add_u32 s22, s22, {CH}\ns_add_u32 s23, s20, s25')
        else: a('s_waitcnt lgkmcnt(%d)' % (3 if FW else 0))
        qk1(1-b, 1-b)
        rdK1(b, ka, ku)
        if u in (6, 7, 0): dmap({6: 0, 7: 1, 0: 2}[u], 22, 23)
        ex(0, 5)
        pv(1, 1-b)
        rdK2(b, ka, ku)
        ex(5, 8); cv(0, 4)
        if FW and u != 6: a('s_waitcnt lgkmcnt(4)')
        qk2(1-b, 1-b)
        rdV1(1-b, va, vu)
        ex(8, 12)
        if FW and u != 6: a('s_waitcnt lgkmcnt(4)')
        pv(0, b)
        rdV2(1-b, va, vu)
        ex(12, 16); cv(4, 8)
    for r in (aK1, aK2, aV): a(f'v_mov_b32 v{r[0]}, v{r[1]}')
    for r, k in ((aK1, 0), (aK2, 1), (aV, 2)): a(f'v_add_u32 v{r[1]}, s25, v{T+8+k}')
    a(f's_add_u32 s25, s25, {CH}\ns_cmp_ge_u32 s25, {3*CH}\ns_cselect_b32 s25, 0, s25')
    a('s_add_u32 s24, s24, 1\ns_cmp_lt_u32 s24, 8\ns_cbranch_scc1 K2a_loop')
    if FW: a('s_waitcnt lgkmcnt(4)')
    a('s_nop 1'); pv(1, 1)
    a('s_waitcnt vmcnt(0) lgkmcnt(0)\ns_nop 7\ns_nop 7')
    stamp(a, 3, 92)
    a(f'v_mov_b32 v{T}, v{O+10}\nv_mov_b32 v{T+1}, v{O+10}\ns_nop 1\nv_permlane32_swap_b32 v{T}, v{T+1}')
    a(f's_mov_b32 s26, {f32bits(2.0**-80)}\nv_cmp_nle_f32 vcc, s26, v{T}\ns_nop 1\ns_nop 3\ns_cbranch_vccnz K2a_slow')
    a('K2a_fin:')
    a(f'v_rcp_f32 v{T}, v{T}\ns_nop 0')
    for i in range(10): a(f'v_mul_f32 v{O+i}, v{O+i}, v{T}')
    for i in range(5): a(f'v_cvt_pk_bf16_f32 v{P+i}, v{O+2*i}, v{O+2*i+1}')
    sc = ' sc1' if FUSE else ''
    a(f'buffer_store_dwordx2 v[{P}:{P+1}], v103, s[16:19], s7 offen{sc}\nbuffer_store_dwordx2 v[{P+2}:{P+3}], v103, s[16:19], s7 offen offset:16{sc}')
    a(f'v_cmp_gt_u32 vcc, 32, v0\ns_nop 1\ns_and_b64 exec, exec, vcc\nbuffer_store_dword v{P+4}, v103, s[16:19], s7 offen offset:32{sc}')
    if STAMP and not FUSE:
        a('s_mov_b64 exec, -1\ns_waitcnt vmcnt(0)'); stamp(a, 4, 92); stamp_flush(a, 5, 92)
    if FUSE: a('s_mov_b64 exec, -1\ns_branch K23_tail')
    else: a('s_endpgm')
    a('K2a_slow:')
    a(f'v_lshlrev_b32 v{T+4}, 4, v0\nv_lshlrev_b32 v{T+5}, 3, v1\nv_add_u32 v{T+5}, 1024, v{T+5}\nv_mov_b32 v{T+6}, v{T+10}')
    a(f'v_and_b32 v{Q2+1}, 0, v{Q2+1}\nv_mov_b32 v{T+7}, 0xff7fffff\ns_mov_b32 s26, 0')
    a('K2a_s1:')
    a(f'buffer_load_dwordx4 v[{Kf[0]}:{Kf[0]+3}], v{T+4}, s[12:15], s26 offen\nbuffer_load_dwordx2 v[{Kf[0]+4}:{Kf[0]+5}], v{T+5}, s[12:15], s26 offen\ns_waitcnt vmcnt(0)')
    qk1(0, 0); qk2(0, 0); a('s_nop 7\ns_nop 7')
    for i in range(16): a(f'v_max_f32 v{T+7}, v{T+7}, v{S[0]+i}')
    a(f's_add_u32 s26, s26, {KVT}\ns_cmp_lt_u32 s26, {64*KVT}\ns_cbranch_scc1 K2a_s1')
    a(f'v_mov_b32 v{T}, v{T+7}\ns_nop 1\nv_permlane32_swap_b32 v{T}, v{T+7}\nv_max_f32 v{T+7}, v{T+7}, v{T}')
    for i in range(16): a(f'v_mov_b32 v{O+i}, 0')
    a('s_mov_b32 s26, 0\nK2a_s2:')
    a(f'buffer_load_dwordx4 v[{Kf[0]}:{Kf[0]+3}], v{T+4}, s[12:15], s26 offen\nbuffer_load_dwordx2 v[{Kf[0]+4}:{Kf[0]+5}], v{T+5}, s[12:15], s26 offen')
    a(f'buffer_load_dwordx4 v[{Vf[0]}:{Vf[0]+3}], v{T+6}, s[12:15], s26 offen\nbuffer_load_dwordx4 v[{Vf[0]+4}:{Vf[0]+7}], v{T+6}, s[12:15], s26 offen offset:640\ns_waitcnt vmcnt(0)')
    qk1(0, 0); qk2(0, 0); a('s_nop 7\ns_nop 7')
    for i in range(16): a(f'v_sub_f32 v{S[0]+i}, v{S[0]+i}, v{T+7}\nv_exp_f32 v{S[0]+i}, v{S[0]+i}')
    a('s_nop 0')
    for i in range(8): a(f'v_cvt_pk_bf16_f32 v{P+i}, v{S[0]+2*i}, v{S[0]+2*i+1}')
    a('s_nop 1')
    a(f'v_mfma_f32_32x32x16_bf16 v[{O}:{O+15}], v[{Vf[0]}:{Vf[0]+3}], v[{P}:{P+3}], v[{O}:{O+15}]')
    a(f'v_mfma_f32_32x32x16_bf16 v[{O}:{O+15}], v[{Vf[0]+4}:{Vf[0]+7}], v[{P+4}:{P+7}], v[{O}:{O+15}]')
    a(f's_add_u32 s26, s26, {KVT}\ns_cmp_lt_u32 s26, {64*KVT}\ns_cbranch_scc1 K2a_s2')
    a('s_nop 7\ns_nop 7')
    a(f'v_mov_b32 v{T}, v{O+10}\nv_mov_b32 v{T+1}, v{O+10}\ns_nop 1\nv_permlane32_swap_b32 v{T}, v{T+1}\ns_branch K2a_fin')

def k2(a):
    a('K2_base:')
    a('s_cmp_ge_u32 s2, 256\ns_cbranch_scc1 K2_end')
    a('s_load_dwordx2 s[40:41], s[0:1], 80')
    a(f'v_lshrrev_b32 v1, 6, v0\ns_nop 0\nv_readfirstlane_b32 s{sWv}, v1\nv_and_b32 v0, 63, v0\ns_nop 2')
    if STAMP: a('v_lshl_add_u32 v123, v1, 6, v0')
    stamp(a, 0, 92)
    a(f's_cmp_ge_u32 s{sWv}, 8\ns_cbranch_scc1 K2_fft')
    b = Asm(); attn_wave(b)
    txt = b.text().replace("    v_mov_b32 v48, 0\n", "    v_mov_b32 v112, v96\n    v_mov_b32 v113, v97\n    v_mov_b32 v114, v98\n    v_mov_b32 v48, 0\n", 1)
    a.l.append(txt.rstrip('\n'))
    a('K2_fft:')
    fft_wave(a)
    a('K2_end:\ns_endpgm')
    if FUSE:
        import k3
        a('K23_tail:')
        ST5[0] = True
        if STAMP: a('s_lshl_b32 s26, s3, 6\nv_add_u32 v123, s26, v0')
        stamp(a, 0)
        a('s_load_dwordx2 s[42:43], s[0:1], 72')
        a('s_waitcnt vmcnt(0)\ns_barrier')
        stamp(a, 5)
        a('s_waitcnt lgkmcnt(0)')
        srd(a, 28, 42, 256)
        a(f's_cmp_lg_u32 s{sWv}, 0\ns_cbranch_scc1 K23_np')
        a('v_mov_b32 v2, 1\nv_mov_b32 v3, s2\ns_mov_b32 exec_hi, 0\ns_mov_b32 exec_lo, 1\nbuffer_store_byte v2, v3, s[28:31], 0 offen sc1\ns_mov_b64 exec, -1')
        a('s_cmp_ge_u32 s2, 192\ns_cbranch_scc1 K23_np')
        a('v_lshlrev_b32 v3, 2, v0\ns_mov_b32 s26, 0')
        a('K23_poll:\nbuffer_load_dword v2, v3, s[28:31], 0 offen sc1\ns_add_u32 s26, s26, 1\ns_waitcnt vmcnt(0)')
        a('v_cmp_ne_u32 vcc, 0x01010101, v2\ns_cmp_ge_u32 s26, 0x8000\ns_cbranch_scc1 K23_got\ns_nop 1\ns_cbranch_vccnz K23_poll')
        a('K23_got:')
        stamp(a, 6)
        a('buffer_inv sc1\ns_waitcnt vmcnt(0)')
        stamp(a, 7)
        a('K23_np:\ns_cmp_ge_u32 s2, 192\ns_cbranch_scc1 K2_end2')
        a('s_barrier')
        k3.k3(a, fused=True)
        a('K2_end2:\ns_endpgm')
```

```python
from common import *
import numpy as np
CH = 20480; LDS_X = 3*CH; LDS = LDS_X + 8192
NV = 168
sWv = 3
def _bf(x): return bf16(float(x))
def tab_F1():
    out = []
    for w in range(2):
        for j in range(4):
            for l in range(64):
                i, kh = l & 31, l >> 5
                c = 16*w + (i >> 1); ro = i & 1
                for jj in range(8):
                    a = 8*j + 4*kh + (jj >> 1); ri = jj & 1
                    th = 2*math.pi*a*c/32
                    v = (math.cos(th) if ri == ro else (math.sin(th) if ri == 1 else -math.sin(th)))
                    out.append(_bf(v))
    return np.array(out, np.uint16).tobytes()
def tab_CS():
    out = []
    for dt in range(2):
        for st in range(4):
            for cs in range(2):
                for l in range(64):
                    i, kh = l & 31, l >> 5
                    d = 32*dt + i
                    for jj in range(8):
                        b = 16*st + 8*(jj >> 2) + 4*kh + (jj & 3)
                        th = 2*math.pi*b*d/64
                        out.append(_bf(math.cos(th) if cs == 0 else math.sin(th)))
    return np.array(out, np.uint16).tobytes()
def tab_TW1():
    out = []
    for w in range(2):
        for mt in range(2):
            for R2 in range(8):
                for l in range(64):
                    i, h = l & 31, l >> 5
                    c = 16*w + (i >> 1)
                    for R in (2*R2, 2*R2+1):
                        g, r = R >> 2, R & 3
                        b = 32*mt + 8*g + 4*h + r
                        ph = 2*math.pi*b*c/2048
                        out += [math.cos(ph), math.sin(ph) if (i & 1) == 0 else -math.sin(ph)]
    return np.array(out, np.float32).tobytes()
def tab_TW2():
    out = []
    for w in range(2):
        for bt in range(2):
            for g in range(4):
                for l in range(64):
                    i, h = l & 31, l >> 5
                    b = 32*bt + i
                    for P in range(2):
                        c = 16*w + 4*g + 2*h + P
                        ph = 2*math.pi*b*c/2048
                        sc = 2.0/(2048*576) if WTB else 1.0
                        out += [sc*math.cos(ph), sc*math.sin(ph)]
    return np.array(out, np.float32).tobytes()
def tab_F4():
    out = []
    for nt in range(2):
        for st in range(4):
            w2, u = st >> 1, st & 1
            for l in range(64):
                i, kh = l & 31, l >> 5
                a = 16*nt + (i >> 1); ro = i & 1
                for jj in range(8):
                    q = jj >> 1; ri = jj & 1
                    c = 16*w2 + 4*(2*u + (q >> 1)) + 2*kh + (q & 1)
                    th = 2*math.pi*a*c/32
                    v = (math.cos(th) if ri == ro else (-math.sin(th) if ri == 1 else math.sin(th)))
                    out.append(_bf(v))
    return np.array(out, np.uint16).tobytes()
OF1, OCS, OTW1, OTW2, OF4 = 0, 8192, 8192+16384, 8192+16384+32768, 8192+16384+32768+16384
def tables():
    b = tab_F1() + tab_CS() + tab_TW1() + tab_TW2() + tab_F4()
    assert len(b) == OF4 + 8192
    return data_text('FTAB', b)
DPP = 'quad_perm:[1,0,3,2] row_mask:0xf bank_mask:0xf'

FUSE = False
FINEV = os.environ.get('FINE', 'a')
FINE = FINEV != '0'
F1E = bool(os.environ.get('F1E'))
def fft_wave(a):
    XA, F1, D, TW, PB, PS, CS, WA, WB, T = 8, 40, 56, 88, 8, 24, 88, 40, 152, 2
    def wreg(k): return (WA + 2*k) if k < 8 else (WB + 2*(k-8))
    a(f's_sub_u32 s4, s{sWv}, 8\ns_and_b32 s5, s4, 1\ns_lshr_b32 s4, s4, 1\ns_lshl_b32 s6, s2, 1\ns_add_u32 s6, s6, s4')
    a('s_cmp_ge_u32 s6, 289\ns_cbranch_scc1 K2_end')
    if os.environ.get('NOFFT'): a('s_branch K2_end')
    a('s_setprio %s' % os.environ.get('FFTPRIO', '0' if FINE else '3'))
    pc_addr(a, 24, 'FTAB', 'K2_pc1')
    a('s_waitcnt lgkmcnt(0)')
    srd(a, 8, 40, 288*8192, WS_XC); srd(a, 12, 40, 289*(8192 if WTB else 16384), WS_WT); srd(a, 16, 40, 576*4096, WS_ZC); srd(a, 20, 24, OF4+8192)
    a('s_cmp_eq_u32 s6, 288\ns_cselect_b32 s7, 0, s6\ns_lshl_b32 s28, s7, 13\ns_add_u32 s29, s28, 4096')
    a('v_and_b32 v1, 31, v0\nv_lshrrev_b32 v6, 5, v0\nv_lshlrev_b32 v7, 2, v1\nv_lshl_add_u32 v7, v6, 10, v7')
    for mt in range(2):
        for j in range(4):
            for q in range(4):
                off = 2048*j + 256*q + 128*mt
                a(f'buffer_load_dword v{XA+16*mt+4*j+q}, v7, s[8:11], s{28 if off < 4096 else 29} offen offset:{off & 4095}')
    a('v_lshlrev_b32 v160+0, 4, v0'.replace('v160+0', 'v168') if False else '')
    if not F1E: a('s_barrier')
    a('v_lshlrev_b32 v5, 4, v0')
    def tload(dst, off_expr_s, imm):
        a(f'buffer_load_dwordx4 v[{dst}:{dst+3}], v5, s[20:23], s{off_expr_s} offen offset:{imm}')
    a(f's_lshl_b32 s30, s5, 12\ns_add_u32 s30, s30, {OF1}')
    for j in range(4): tload(F1+4*j, 30, 1024*j)
    if F1E: a('s_barrier')
    for mt in range(2):
        for half in range(2):
            a(f's_mul_i32 s30, s5, 16384\ns_add_u32 s30, s30, {OTW1 + 8192*mt + 4096*half}')
            for k in range(4): tload(TW + 32*mt + 16*half + 4*k, 30, 1024*k)
    a('v_and_b32 v2, 1, v0\nv_cmp_eq_u32 vcc, 1, v2\nv_mov_b32 v3, 0x80008000\nv_mov_b32 v4, 0')
    a('s_nop 0\nv_cndmask_b32 v6, v4, v3, vcc\nv_cndmask_b32 v7, v3, v4, vcc')
    if WTB: a('v_mov_b32 v2, 0x80000000\nv_mov_b32 v3, 0\nv_cndmask_b32 v1, v2, v3, vcc\ns_mov_b32 s35, 0xffff0000')
    else: a('v_mov_b32 v2, -1.0\nv_mov_b32 v3, 1.0\nv_cndmask_b32 v1, v2, v3, vcc')
    stamp(a, 1, 92)
    a('s_waitcnt vmcnt(20)')
    a('s_cmp_eq_u32 s6, 0\ns_cbranch_scc1 K2f_sp0\ns_cmp_eq_u32 s6, 288\ns_cbranch_scc0 K2f_nosp')
    for k in range(32): a(f'v_lshrrev_b32 v{XA+k}, 16, v{XA+k}')
    a('s_branch K2f_nosp\nK2f_sp0:')
    for k in range(32): a(f'v_and_b32 v{XA+k}, 0xffff, v{XA+k}')
    a('K2f_nosp:')
    a('s_waitcnt vmcnt(16)\ns_nop 1')
    for mt in range(2):
        for j in range(4):
            c = '0' if j == 0 else f'v[{D+16*mt}:{D+16*mt+15}]'
            a(f'v_mfma_f32_32x32x16_bf16 v[{D+16*mt}:{D+16*mt+15}], v[{XA+16*mt+4*j}:{XA+16*mt+4*j+3}], v[{F1+4*j}:{F1+4*j+3}], {c}')
    a('s_barrier')
    a('s_waitcnt vmcnt(0)\ns_nop 7\ns_nop 3')
    def cmul_lane(dreg, creg, sreg, tdst):
        a(f'v_mul_f32 v{tdst}, v{dreg}, v{creg}\nv_fmac_f32_dpp v{tdst}, v{dreg}, v{sreg} {DPP}')
    for mt in range(2):
        if mt == 1 and FINEV in '1a': a('s_barrier')
        for R2 in range(8):
            tw = TW + 32*mt + 4*R2; d = D + 16*mt + 2*R2
            cmul_lane(d, tw, tw+1, T); cmul_lane(d+1, tw+2, tw+3, T+1)
            a(f'v_cvt_pk_bf16_f32 v{PB+8*mt+R2}, v{T}, v{T+1}')
    a('s_nop 1')
    for k in range(16): a(f'v_xor_b32_dpp v{PS+k}, v{PB+k}, v6 {DPP}')
    for dt in range(2):
        for half in range(2):
            a(f's_mov_b32 s30, {OCS + 8192*dt + 4096*half}')
            for k in range(4): tload(CS + 32*dt + 16*half + 4*k, 30, 1024*k)
    a('v_and_b32 v2, 31, v0\nv_lshrrev_b32 v2, 1, v2\ns_lshl_b32 s30, s5, 4\nv_add_u32 v2, s30, v2\nv_lshlrev_b32 v2, %d, v2\nv_lshrrev_b32 v3, 5, v0\nv_lshl_add_u32 v4, v3, %d, v2' % ((2, 9) if WTB else (3, 10)))
    def wload(dt):
        for g in range(4 if WTB else 0):
            a(f's_lshl_b32 s30, s6, 13\ns_add_u32 s30, s30, {4096*dt + 1024*g}')
            for r in range(4):
                a(f'buffer_load_dword v{wreg(4*g + r)+1}, v4, s[12:15], s30 offen offset:{128*r}')
        for g in range(0 if WTB else 4):
            a(f's_lshl_b32 s30, s6, 14\ns_add_u32 s30, s30, {8192*dt + 2048*g}')
            for r in range(4):
                k = 4*g + r
                a(f'buffer_load_dwordx2 v[{wreg(k)}:{wreg(k)+1}], v4, s[12:15], s30 offen offset:{256*r}')
    wload(0)
    stamp(a, 2, 92)
    a('s_barrier')
    a('s_waitcnt vmcnt(16)')
    for dt in range(2):
        first = True
        for st in range(4):
            for cs in range(2):
                src = (PB if cs == 0 else PS) + 4*st
                c = '0' if first else f'v[{D+16*dt}:{D+16*dt+15}]'; first = False
                f = CS + 32*dt + 8*st + 4*cs
                a(f'v_mfma_f32_32x32x16_bf16 v[{D+16*dt}:{D+16*dt+15}], v[{f}:{f+3}], v[{src}:{src+3}], {c}')
    if FINEV in '1b': a('s_barrier')
    a('s_waitcnt vmcnt(0)\ns_nop 7\ns_nop 3')
    def wmul(dt):
        for k in range(0, 16, 2):
            for e in range(2):
                wr = wreg(k+e); d = D + 16*dt + k + e
                if WTB: a(f'v_lshlrev_b32 v{wr}, 16, v{wr+1}\nv_bitop3_b32 v{wr+1}, v{wr+1}, s35, v1 bitop3:0x6a')
                else: a(f'v_mul_f32 v{wr+1}, v{wr+1}, v1')
                cmul_lane(d, wr, wr+1, T+e)
            a(f'v_cvt_pk_bf16_f32 v{PB+8*dt+(k>>1)}, v{T}, v{T+1}')
    wmul(0)
    wload(1)
    a('s_barrier')
    a('s_waitcnt vmcnt(0)')
    wmul(1)
    a('s_nop 1')
    for k in range(16): a(f'v_xor_b32_dpp v{PS+k}, v{PB+k}, v7 {DPP}')
    def t2reg(bt, g): return (WA if bt == 0 else WB) + 4*g
    for bt in range(2):
        a(f's_lshl_b32 s30, s5, 13\ns_add_u32 s30, s30, {OTW2 + 4096*bt}')
        for g in range(4): tload(t2reg(bt, g), 30, 1024*g)
    for bt in range(2):
        first = True
        for st in range(4):
            for cs in range(2):
                src = (PB if cs == 0 else PS) + 4*st
                c = '0' if first else f'v[{D+16*bt}:{D+16*bt+15}]'; first = False
                f = CS + 32*bt + 8*st + 4*cs
                a(f'v_mfma_f32_32x32x16_bf16 v[{D+16*bt}:{D+16*bt+15}], v[{src}:{src+3}], v[{f}:{f+3}], {c}')
    a('s_barrier')
    for nt in range(2):
        a(f's_mov_b32 s30, {OF4 + 4096*nt}')
        for st in range(4): tload(CS + 16*nt + 4*st, 30, 1024*st)
    a('s_waitcnt vmcnt(8)\ns_nop 7')
    if WTB:
        a('s_cmp_eq_u32 s6, 0\ns_cbranch_scc1 K2f_hs\ns_cmp_eq_u32 s6, 288\ns_cbranch_scc0 K2f_nhs\nK2f_hs:')
        for bt in range(2):
            for k in range(16): a(f'v_mul_f32 v{t2reg(bt, 0)+k}, 0.5, v{t2reg(bt, 0)+k}')
        a('K2f_nhs:')
    E = 8
    for bt in range(2):
        for g in range(4):
            for P in range(2):
                d = D + 16*bt + 4*g + 2*P; tw = t2reg(bt, g) + 2*P
                a(f'v_mul_f32 v{T}, v{d}, v{tw}\nv_mul_f32 v{T+1}, v{d+1}, v{tw}')
                a(f'v_fma_f32 v{T}, -v{d+1}, v{tw+1}, v{T}\nv_fma_f32 v{T+1}, v{d}, v{tw+1}, v{T+1}')
                a(f'v_cvt_pk_bf16_f32 v{E+8*bt+2*g+P}, v{T}, v{T+1}')
    a(f's_sub_u32 s30, s{sWv}, 8\ns_lshl_b32 s30, s30, 11\ns_add_u32 s30, s30, {LDS_X}\nv_add_u32 v2, s30, v5')
    a('s_cmp_eq_u32 s5, 0\ns_cbranch_scc1 K2f_w0')
    a('ds_write_b128 v2, v[8:11]\nds_write_b128 v2, v[12:15] offset:1024')
    for k in range(8): a(f'v_mov_b32 v{32+k}, v{16+k}')
    a('s_branch K2f_wj\nK2f_w0:')
    a('ds_write_b128 v2, v[16:19]\nds_write_b128 v2, v[20:23] offset:1024')
    for k in range(8): a(f'v_mov_b32 v{24+k}, v{8+k}')
    a('K2f_wj:')
    stamp(a, 3, 92)
    a('s_waitcnt lgkmcnt(0)\ns_barrier')
    a('v_xor_b32 v2, 2048, v2')
    a('s_cmp_eq_u32 s5, 0\ns_cbranch_scc1 K2f_r0')
    a('ds_read_b128 v[24:27], v2\nds_read_b128 v[28:31], v2 offset:1024\ns_branch K2f_rj\nK2f_r0:')
    a('ds_read_b128 v[32:35], v2\nds_read_b128 v[36:39], v2 offset:1024\nK2f_rj:')
    a('s_waitcnt vmcnt(0) lgkmcnt(0)')
    for nt in range(2):
        for st in range(4):
            c = '0' if st == 0 else f'v[{D+16*nt}:{D+16*nt+15}]'
            f = CS + 16*nt + 4*st
            a(f'v_mfma_f32_32x32x16_bf16 v[{D+16*nt}:{D+16*nt+15}], v[{24+4*st}:{24+4*st+3}], v[{f}:{f+3}], {c}')
    a('v_and_b32 v2, 31, v0\nv_lshrrev_b32 v3, 1, v2\nv_lshlrev_b32 v3, 7, v3\nv_lshrrev_b32 v4, 5, v0\nv_lshl_add_u32 v3, v4, 3, v3\nv_and_b32 v2, 1, v2')
    a('s_lshl_b32 s31, s5, 6\ns_add_u32 s31, s31, s28')
    a('s_cmp_eq_u32 s6, 0\ns_cbranch_scc1 K2f_st0\ns_cmp_eq_u32 s6, 288\ns_cbranch_scc1 K2f_st288')
    a('v_lshl_add_u32 v3, v2, 12, v3\ns_branch K2f_stj')
    a('K2f_st288:\nv_add_u32 v3, 4096, v3\nK2f_st0:\nv_cmp_eq_u32 vcc, 0, v2\ns_nop 1\ns_and_b64 exec, exec, vcc')
    a('K2f_stj:\ns_nop 7')
    for nt in range(2):
        for g in range(4):
            d = D + 16*nt + 4*g; p = 8 + 2*(4*nt+g)
            a(f'v_cvt_pk_bf16_f32 v{p}, v{d}, v{d+1}\nv_cvt_pk_bf16_f32 v{p+1}, v{d+2}, v{d+3}')
            a(f'buffer_store_dwordx2 v[{p}:{p+1}], v3, s[16:19], s31 offen offset:{2048*nt + 16*g}' + (' sc1' if FUSE else ''))
    if STAMP:
        a('s_mov_b64 exec, -1\ns_waitcnt vmcnt(0)\ns_lshl_b32 s26, s3, 6\nv_add_u32 v123, s26, v0'); stamp(a, 4, 92); stamp_flush(a, 5, 92)
    if FUSE: a('s_waitcnt vmcnt(0)')
    a('s_endpgm')

def attn_wave(a):
    Q1, Q2, S, P, O = 2, 6, [8, 24], 40, 48
    Kf, Vf = [64, 72], [80, 88]
    aK1, aK2, aV = [96, 99], [97, 100], [98, 101]
    T = 104
    if os.environ.get('ATTPRIO'): a('s_setprio %s' % os.environ['ATTPRIO'])
    if os.environ.get('ASYM'): a(f's_cmp_ge_u32 s{sWv}, 4\ns_cbranch_scc1 K2a_lp\ns_setprio %s\nK2a_lp:' % os.environ['ASYM'])
    if os.environ.get('NOXQ'): a(f's_lshr_b32 s4, s2, 2\ns_and_b32 s5, s2, 3\ns_lshl_b32 s5, s5, 3\ns_add_u32 s5, s5, s{sWv}')
    else:
        a(f's_and_b32 s4, s2, 7\ns_lshl_b32 s4, s4, 3\ns_lshr_b32 s5, s2, 5\ns_add_u32 s4, s4, s5\ns_lshr_b32 s5, s2, 3\ns_and_b32 s5, s5, 3\ns_lshl_b32 s5, s5, 3\ns_add_u32 s5, s5, s{sWv}')
    a('s_waitcnt lgkmcnt(0)')
    srd(a, 8, 40, NB_ACT, WS_Q); srd(a, 12, 40, 64*KVT, WS_KV); srd(a, 16, 40, NB_ACT, WS_O)
    srd(a, 28, 40, 256, WS_KMX)
    a('v_lshlrev_b32 v102, 4, v0\nv_lshlrev_b32 v116, 2, v0\nbuffer_load_dword v117, v116, s[28:31], 0 offen')
    a(f's_mul_i32 s20, s{sWv}, {KVT}')
    def dmap(n, g_s, l_s):
        if n == 2: a('s_mov_b32 exec_hi, 0')
        a(f's_add_u32 m0, s{l_s}, {1024*n}\ns_add_u32 s27, s{g_s}, {1024*n}\nbuffer_load_dwordx4 v102, s[12:15], s27 offen lds')
        if n == 2: a('s_mov_b32 exec_hi, -1')
    a(f'v_and_b32 v1, 31, v0\ns_lshl_b32 s6, s4, 5\nv_add_u32 v{T}, s6, v1\ns_movk_i32 s7, 1152\nv_mul_lo_u32 v{T}, v{T}, s7')
    a(f'v_lshrrev_b32 v{T+1}, 5, v0\nv_lshl_add_u32 v103, v{T+1}, 3, v{T}\ns_mul_i32 s7, s5, 36')
    a(f'buffer_load_dwordx2 v[{Q1}:{Q1+1}], v103, s[8:11], s7 offen\nbuffer_load_dwordx2 v[{Q1+2}:{Q1+3}], v103, s[8:11], s7 offen offset:16')
    a(f'buffer_load_dword v{Q2}, v{T}, s[8:11], s7 offen offset:32')
    a('s_mov_b32 s22, s20\ns_mov_b32 s23, s20')
    for n in range(3): dmap(n, 22, 23)
    a(f's_add_u32 s22, s20, {CH}\ns_add_u32 s23, s20, {CH}')
    for n in range(2): dmap(n, 22, 23)
    a(f'v_lshlrev_b32 v{aK1[0]}, 4, v0\nv_lshlrev_b32 v{aK2[0]}, 3, v1\nv_add_u32 v{aK2[0]}, 1024, v{aK2[0]}')
    a(f'v_mov_b32 v{T+2}, 19\nv_cmp_gt_u32 vcc, 19, v1\ns_nop 1\nv_cndmask_b32 v{T+2}, v{T+2}, v1, vcc')
    if False: a(f'v_subrev_u32 v{T+3}, 20, v1\nv_cmp_gt_u32 vcc, 8, v{T+3}\ns_nop 1\nv_cndmask_b32 v{T+2}, v{T+2}, 0, vcc'.replace(f'v_cndmask_b32 v{T+2}, v{T+2}, 0, vcc', f'v_mov_b32 v{T+3}, 0\nv_cndmask_b32 v{T+2}, v{T+2}, v{T+3}, vcc'))
    a(f'v_mul_u32_u24 v{T+3}, 20, v{T+1}\nv_add_u32 v{T+2}, v{T+2}, v{T+3}\nv_lshlrev_b32 v{T+2}, 4, v{T+2}\nv_add_u32 v{aV[0]}, 1280, v{T+2}')
    for r in (aK1, aK2, aV): a(f'v_add_u32 v{r[1]}, {CH}, v{r[0]}')
    for i in range(16): a(f'v_mov_b32 v{O+i}, 0')
    EARLYW = os.environ.get('EARLYW', '0') == '1'
    a('s_waitcnt vmcnt(8)' if EARLYW else 's_waitcnt vmcnt(2)')
    for ctl in ('row_shr:1', 'row_shr:2', 'row_shr:4', 'row_shr:8', 'row_bcast:15 row_mask:0xa', 'row_bcast:31 row_mask:0xc'):
        rm = '' if 'row_mask' in ctl else ' row_mask:0xf'
        a(f's_nop 1\nv_max_u32_dpp v117, v117, v117 {ctl}{rm} bank_mask:0xf')
    a('s_nop 1\nv_readlane_b32 s44, v117, 63')
    if EARLYW: a('s_waitcnt vmcnt(5)')
    a(f'v_cmp_gt_u32 vcc, 32, v0\nv_mov_b32 v{T}, 0\ns_nop 0\nv_cndmask_b32 v{Q2}, v{T}, v{Q2}, vcc')
    a(f'v_dot2_f32_bf16 v{T}, v{Q1}, v{Q1}, v{T}')
    for r in (Q1+1, Q1+2, Q1+3, Q2): a(f's_nop 2\nv_dot2_f32_bf16 v{T}, v{r}, v{r}, v{T}')
    a(f's_nop 2\nv_mov_b32 v{T+1}, v{T}\ns_nop 1\nv_permlane32_swap_b32 v{T}, v{T+1}\nv_add_f32 v{T}, v{T}, v{T+1}')
    a(f'v_mul_f32 v{T}, s44, v{T}\nv_sqrt_f32 v{T}, v{T}\ns_nop 0\nv_mul_f32 v{T}, {f32bits(-(1+2**-6)):#x}, v{T}')
    a(f'v_mov_b32 v{T+1}, 0\nv_cvt_pk_bf16_f32 v{T}, v{T}, v{T+1}\nv_cndmask_b32 v{Q2+1}, v{T+1}, v{T}, vcc')
    if EARLYW: a('s_waitcnt vmcnt(2)')
    stamp(a, 1, 92)
    a('s_barrier')
    stamp(a, 2, 92)
    def rdK(buf, areg, u):
        a(f'ds_read_b128 v[{Kf[buf]}:{Kf[buf]+3}], v{aK1[areg]} offset:{u*KVT}\nds_read_b64 v[{Kf[buf]+4}:{Kf[buf]+5}], v{aK2[areg]} offset:{u*KVT}')
    def rdV(buf, areg, u):
        a(f'ds_read_b128 v[{Vf[buf]}:{Vf[buf]+3}], v{aV[areg]} offset:{u*KVT}\nds_read_b128 v[{Vf[buf]+4}:{Vf[buf]+7}], v{aV[areg]} offset:{u*KVT+640}')
    def qk1(sb, kb): a(f'v_mfma_f32_32x32x16_bf16 v[{S[sb]}:{S[sb]+15}], v[{Kf[kb]}:{Kf[kb]+3}], v[{Q1}:{Q1+3}], 0')
    def qk2(sb, kb): a(f'v_mfma_f32_32x32x8bf16_1k v[{S[sb]}:{S[sb]+15}], v[{Kf[kb]+4}:{Kf[kb]+5}], v[{Q2}:{Q2+1}], v[{S[sb]}:{S[sb]+15}]')
    def rdK1(buf, areg, u): a(f'ds_read_b128 v[{Kf[buf]}:{Kf[buf]+3}], v{aK1[areg]} offset:{u*KVT}')
    def rdK2(buf, areg, u): a(f'ds_read_b64 v[{Kf[buf]+4}:{Kf[buf]+5}], v{aK2[areg]} offset:{u*KVT}')
    def rdV1(buf, areg, u): a(f'ds_read_b128 v[{Vf[buf]}:{Vf[buf]+3}], v{aV[areg]} offset:{u*KVT}')
    def rdV2(buf, areg, u): a(f'ds_read_b128 v[{Vf[buf]+4}:{Vf[buf]+7}], v{aV[areg]} offset:{u*KVT+640}')
    def pv(h, vb): a(f'v_mfma_f32_32x32x16_bf16 v[{O}:{O+15}], v[{Vf[vb]+4*h}:{Vf[vb]+4*h+3}], v[{P+4*h}:{P+4*h+3}], v[{O}:{O+15}]')
    rdK(0, 0, 0); rdK(1, 0, 1); rdV(0, 0, 0)
    for i in range(4): a(f'v_mov_b32 v{P+4+i}, 0\nv_mov_b32 v{Vf[1]+4+i}, 0')
    a('s_waitcnt lgkmcnt(4)'); qk1(0, 0); qk2(0, 0)
    a(f's_mov_b32 s24, 0\ns_mov_b32 s25, {2*CH}')
    a('s_nop 7\ns_nop 3')
    FW = os.environ.get('FW', '1') == '1'
    FW2 = FW and os.environ.get('FW2', '1') == '1'
    a('.p2align 6\nK2a_loop:')
    for u in range(8):
        b = u & 1; s = S[b]
        ex = lambda lo, hi: [a(f'{"v_mov_b32" if os.environ.get("NOEXP") else "v_exp_f32"} v{s+i}, v{s+i}') for i in range(lo, hi)]
        cv = lambda lo, hi: [a(f'v_cvt_pk_bf16_f32 v{P+i}, v{s+2*i}, v{s+2*i+1}') for i in range(lo, hi)]
        ka, ku = (0, u+2) if u + 2 < 8 else (1, u+2-8)
        va, vu = (0, u+1) if u + 1 < 8 else (1, 0)
        if u == 6:
            a('s_waitcnt vmcnt(0) lgkmcnt(%d)\ns_barrier' % (3 if FW2 else 0))
            a(f's_add_u32 s22, s22, {CH}\ns_add_u32 s23, s20, s25')
        else: a('s_waitcnt lgkmcnt(%d)' % (3 if FW else 0))
        qk1(1-b, 1-b)
        rdK1(b, ka, ku)
        if u in (6, 7, 0): dmap({6: 0, 7: 1, 0: 2}[u], 22, 23)
        ex(0, 5)
        pv(1, 1-b)
        rdK2(b, ka, ku)
        ex(5, 8); cv(0, 4)
        if FW and (u != 6 or FW2): a('s_waitcnt lgkmcnt(4)')
        qk2(1-b, 1-b)
        rdV1(1-b, va, vu)
        ex(8, 12)
        if FW and (u != 6 or FW2): a('s_waitcnt lgkmcnt(4)')
        pv(0, b)
        rdV2(1-b, va, vu)
        ex(12, 16); cv(4, 8)
    for r in (aK1, aK2, aV): a(f'v_mov_b32 v{r[0]}, v{r[1]}')
    for r, k in ((aK1, 0), (aK2, 1), (aV, 2)): a(f'v_add_u32 v{r[1]}, s25, v{T+8+k}')
    a(f's_add_u32 s25, s25, {CH}\ns_cmp_ge_u32 s25, {3*CH}\ns_cselect_b32 s25, 0, s25')
    a('s_add_u32 s24, s24, 1\ns_cmp_lt_u32 s24, 8\ns_cbranch_scc1 K2a_loop')
    if FW: a('s_waitcnt lgkmcnt(4)')
    a('s_nop 1'); pv(1, 1)
    a('s_waitcnt vmcnt(0) lgkmcnt(0)\ns_nop 7\ns_nop 7')
    stamp(a, 3, 92)
    a(f'v_mov_b32 v{T}, v{O+10}\nv_mov_b32 v{T+1}, v{O+10}\ns_nop 1\nv_permlane32_swap_b32 v{T}, v{T+1}')
    a(f's_mov_b32 s26, {f32bits(2.0**-80)}\nv_cmp_nle_f32 vcc, s26, v{T}\ns_nop 1\ns_nop 3\ns_cbranch_vccnz K2a_slow')
    a('K2a_fin:')
    a(f'v_rcp_f32 v{T}, v{T}\ns_nop 0')
    for i in range(10): a(f'v_mul_f32 v{O+i}, v{O+i}, v{T}')
    for i in range(5): a(f'v_cvt_pk_bf16_f32 v{P+i}, v{O+2*i}, v{O+2*i+1}')
    sc = ' sc1' if FUSE else ''
    a(f'buffer_store_dwordx2 v[{P}:{P+1}], v103, s[16:19], s7 offen{sc}\nbuffer_store_dwordx2 v[{P+2}:{P+3}], v103, s[16:19], s7 offen offset:16{sc}')
    a(f'v_cmp_gt_u32 vcc, 32, v0\ns_nop 1\ns_and_b64 exec, exec, vcc\nbuffer_store_dword v{P+4}, v103, s[16:19], s7 offen offset:32{sc}')
    if STAMP and not FUSE:
        a('s_mov_b64 exec, -1\ns_waitcnt vmcnt(0)'); stamp(a, 4, 92); stamp_flush(a, 5, 92)
    if FUSE: a('s_mov_b64 exec, -1\ns_branch K23_tail')
    else: a('s_endpgm')
    a('K2a_slow:')
    a(f'v_lshlrev_b32 v{T+4}, 4, v0\nv_lshlrev_b32 v{T+5}, 3, v1\nv_add_u32 v{T+5}, 1024, v{T+5}\nv_mov_b32 v{T+6}, v{T+10}')
    a(f'v_and_b32 v{Q2+1}, 0, v{Q2+1}\nv_mov_b32 v{T+7}, 0xff7fffff\ns_mov_b32 s26, 0')
    a('K2a_s1:')
    a(f'buffer_load_dwordx4 v[{Kf[0]}:{Kf[0]+3}], v{T+4}, s[12:15], s26 offen\nbuffer_load_dwordx2 v[{Kf[0]+4}:{Kf[0]+5}], v{T+5}, s[12:15], s26 offen\ns_waitcnt vmcnt(0)')
    qk1(0, 0); qk2(0, 0); a('s_nop 7\ns_nop 7')
    for i in range(16): a(f'v_max_f32 v{T+7}, v{T+7}, v{S[0]+i}')
    a(f's_add_u32 s26, s26, {KVT}\ns_cmp_lt_u32 s26, {64*KVT}\ns_cbranch_scc1 K2a_s1')
    a(f'v_mov_b32 v{T}, v{T+7}\ns_nop 1\nv_permlane32_swap_b32 v{T}, v{T+7}\nv_max_f32 v{T+7}, v{T+7}, v{T}')
    for i in range(16): a(f'v_mov_b32 v{O+i}, 0')
    a('s_mov_b32 s26, 0\nK2a_s2:')
    a(f'buffer_load_dwordx4 v[{Kf[0]}:{Kf[0]+3}], v{T+4}, s[12:15], s26 offen\nbuffer_load_dwordx2 v[{Kf[0]+4}:{Kf[0]+5}], v{T+5}, s[12:15], s26 offen')
    a(f'buffer_load_dwordx4 v[{Vf[0]}:{Vf[0]+3}], v{T+6}, s[12:15], s26 offen\nbuffer_load_dwordx4 v[{Vf[0]+4}:{Vf[0]+7}], v{T+6}, s[12:15], s26 offen offset:640\ns_waitcnt vmcnt(0)')
    qk1(0, 0); qk2(0, 0); a('s_nop 7\ns_nop 7')
    for i in range(16): a(f'v_sub_f32 v{S[0]+i}, v{S[0]+i}, v{T+7}\nv_exp_f32 v{S[0]+i}, v{S[0]+i}')
    a('s_nop 0')
    for i in range(8): a(f'v_cvt_pk_bf16_f32 v{P+i}, v{S[0]+2*i}, v{S[0]+2*i+1}')
    a('s_nop 1')
    a(f'v_mfma_f32_32x32x16_bf16 v[{O}:{O+15}], v[{Vf[0]}:{Vf[0]+3}], v[{P}:{P+3}], v[{O}:{O+15}]')
    a(f'v_mfma_f32_32x32x16_bf16 v[{O}:{O+15}], v[{Vf[0]+4}:{Vf[0]+7}], v[{P+4}:{P+7}], v[{O}:{O+15}]')
    a(f's_add_u32 s26, s26, {KVT}\ns_cmp_lt_u32 s26, {64*KVT}\ns_cbranch_scc1 K2a_s2')
    a('s_nop 7\ns_nop 7')
    a(f'v_mov_b32 v{T}, v{O+10}\nv_mov_b32 v{T+1}, v{O+10}\ns_nop 1\nv_permlane32_swap_b32 v{T}, v{T+1}\ns_branch K2a_fin')

def k2(a):
    a('K2_base:')
    a('s_cmp_ge_u32 s2, 256\ns_cbranch_scc1 K2_end')
    a('s_load_dwordx2 s[40:41], s[0:1], 80')
    a(f'v_lshrrev_b32 v1, 6, v0\ns_nop 0\nv_readfirstlane_b32 s{sWv}, v1\nv_and_b32 v0, 63, v0\ns_nop 2')
    if STAMP: a('v_lshl_add_u32 v123, v1, 6, v0')
    stamp(a, 0, 92)
    a(f's_cmp_ge_u32 s{sWv}, 8\ns_cbranch_scc1 K2_fft')
    b = Asm(); attn_wave(b)
    txt = b.text().replace("    v_mov_b32 v48, 0\n", "    v_mov_b32 v112, v96\n    v_mov_b32 v113, v97\n    v_mov_b32 v114, v98\n    v_mov_b32 v48, 0\n", 1)
    a.l.append(txt.rstrip('\n'))
    a('K2_fft:')
    fft_wave(a)
    a('K2_end:\ns_endpgm')
    if FUSE:
        import k3
        a('K23_tail:')
        ST5[0] = True
        if STAMP: a('s_lshl_b32 s26, s3, 6\nv_add_u32 v123, s26, v0')
        stamp(a, 0)
        a('s_load_dwordx2 s[42:43], s[0:1], 72')
        a('s_waitcnt vmcnt(0)\ns_barrier')
        stamp(a, 5)
        a('s_waitcnt lgkmcnt(0)')
        srd(a, 28, 42, 256)
        a(f's_cmp_lg_u32 s{sWv}, 0\ns_cbranch_scc1 K23_np')
        a('v_mov_b32 v2, 1\nv_mov_b32 v3, s2\ns_mov_b32 exec_hi, 0\ns_mov_b32 exec_lo, 1\nbuffer_store_byte v2, v3, s[28:31], 0 offen sc1\ns_mov_b64 exec, -1')
        a('s_cmp_ge_u32 s2, 192\ns_cbranch_scc1 K23_np')
        a('v_lshlrev_b32 v3, 2, v0\ns_mov_b32 s26, 0')
        a('K23_poll:\nbuffer_load_dword v2, v3, s[28:31], 0 offen sc1\ns_add_u32 s26, s26, 1\ns_waitcnt vmcnt(0)')
        a('v_cmp_ne_u32 vcc, 0x01010101, v2\ns_cmp_ge_u32 s26, 0x8000\ns_cbranch_scc1 K23_got\ns_nop 1\ns_cbranch_vccnz K23_poll')
        a('K23_got:')
        stamp(a, 6)
        a('buffer_inv sc1\ns_waitcnt vmcnt(0)')
        stamp(a, 7)
        a('K23_np:\ns_cmp_ge_u32 s2, 192\ns_cbranch_scc1 K2_end2')
        a('s_barrier')
        k3.k3(a, fused=True)
        a('K2_end2:\ns_endpgm')
```

```python
from gemm import *
import os
def k1(a):
    only = os.environ.get('K1ONLY')
    a('s_cmp_ge_u32 s2, 256\ns_cbranch_scc1 K1_end')
    a('s_load_dwordx4 s[36:39], s[0:1], 0\ns_load_dwordx4 s[40:43], s[0:1], 16\ns_load_dwordx4 s[44:47], s[0:1], 32\ns_load_dwordx2 s[48:49], s[0:1], 48\ns_load_dwordx2 s[50:51], s[0:1], 80')
    lane_ids(a)
    if only:
        lo, hi = {'q': (0,96), 'a': (96,192), 'kv': (192,208), 'wt': (208,256)}[only]
        a(f's_cmp_lt_u32 s2, {lo}\ns_cbranch_scc1 K1_end\ns_cmp_ge_u32 s2, {hi}\ns_cbranch_scc1 K1_end')
    a('s_cmp_ge_u32 s2, 208\ns_cbranch_scc1 K1_wt')
    a('s_cmp_ge_u32 s2, 192\ns_cbranch_scc1 K1_kv')
    a('s_cmp_ge_u32 s2, 96\ns_cbranch_scc1 K1_af')
    a(f's_lshr_b32 s{sT0}, s2, 3\ns_and_b32 s{sT1}, s2, 7\ns_lshl_b32 s{sT1}, s{sT1}, 1\ns_cmp_ge_u32 s{sT0}, 6\ns_cselect_b32 s{sT2}, 1, 0\ns_add_u32 s{sT1}, s{sT1}, s{sT2}\ns_lshl_b32 s{sRow0}, s{sT1}, 7\ns_mul_i32 s{sT2}, s{sT2}, 6\ns_sub_u32 s{sT0}, s{sT0}, s{sT2}\ns_mul_i32 s{sCol0}, s{sT0}, 96')
    a('s_waitcnt lgkmcnt(0)')
    srd(a, sS, 42, NB_ACT); srd(a, sW, 44, 576*576*2); srd(a, sO, 50, NB_ACT, WS_Q)
    a(f's_mul_i32 s33, s{sRow0}, 1152\ns_lshl_b32 s34, s{sCol0}, 1\ns_add_u32 s33, s33, s34')
    def su(part): setup_R(a, 'S', 1152, sRow0, part); setup_T(a, 'W', 1152, sCol0, part)
    gemm_task(a, 'K1q', 'R', 'T', 128, 64*1152, su, 'row', 33, 1152, scale=QSCALE)
    a('K1_af:')
    a('s_sub_u32 s3, s2, 96')
    a(f's_lshr_b32 s{sT0}, s3, 3\ns_and_b32 s{sT1}, s3, 7\ns_lshl_b32 s{sT1}, s{sT1}, 1\ns_cmp_ge_u32 s{sT0}, 6\ns_cselect_b32 s{sT2}, 1, 0\ns_add_u32 s{sT1}, s{sT1}, s{sT2}\ns_lshl_b32 s{sRow0}, s{sT1}, 7\ns_mul_i32 s{sT2}, s{sT2}, 6\ns_sub_u32 s{sT0}, s{sT0}, s{sT2}\ns_mul_i32 s{sCol0}, s{sT0}, 96')
    pc_addr(a, 52, 'TTAB', 'K1_pc1')
    a('s_waitcnt lgkmcnt(0)')
    srd(a, sS, 36, NB_ACT); srd(a, sW, 52, 576*1152); srd(a, sO, 50, 288*8192, WS_XC)
    a(f's_lshl_b32 s33, s{sCol0}, 12\ns_lshl_b32 s34, s{sRow0}, 2\ns_add_u32 s33, s33, s34')
    def su(part): setup_R(a, 'S', 1152, sRow0, part); setup_R(a, 'W', 1152, sCol0, part)
    gemm_task(a, 'K1a', 'R', 'R', 128, 128, su, 'xc', 33, 8192)
    a('K1_kv:')
    a(f's_sub_u32 s3, s2, 192\ns_lshr_b32 s{sT0}, s3, 3\ns_and_b32 s3, s3, 7\ns_lshl_b32 s3, s3, 1\ns_add_u32 s3, s3, s{sT0}\ns_lshl_b32 s{sRow0}, s3, 7')
    a('s_waitcnt lgkmcnt(0)')
    srd(a, sS, 42, NB_ACT)
    a(f's_cmp_lt_u32 s{sWv}, 2\ns_cselect_b32 s52, s46, s48\ns_cselect_b32 s53, s47, s49')
    srd(a, sW, 52, 576*36); srd(a, sO, 50, 64*KVT + 0x40000, WS_KV)
    t = vT
    a(f's_cmp_lt_u32 s{sW8}, 4\ns_cbranch_scc1 K1kv_cp')
    setup_R(a, 'S', 1152, sRow0, 'dma')
    a(f's_and_b32 s{sT0}, s{sWv}, 1\ns_mul_i32 s{sT0}, s{sT0}, 320')
    a(f's_movk_i32 s{sT1}, 6554')
    for i in range(5):
        a(f'v_add_u32 v{t}, s{sT0}, v0\nv_add_u32 v{t}, {64*i}, v{t}\nv_mul_lo_u32 v{t+1}, v{t}, s{sT1}\nv_lshrrev_b32 v{t+1}, 16, v{t+1}')
        a(f'v_mul_u32_u24 v{t+2}, 10, v{t+1}\nv_sub_u32 v{t+2}, v{t}, v{t+2}\nv_min_u32 v{t+2}, 8, v{t+2}\nv_mul_u32_u24 v{t+1}, 36, v{t+1}\nv_lshl_add_u32 v{vW+i}, v{t+2}, 2, v{t+1}')
    loader(a, 'K1kv', 'R', 'T', 128, 64*36, kv=True)
    a('s_endpgm\nK1kv_cp:')
    setup_R(a, 'S', 1152, sRow0, 'rd')
    a(f'v_lshrrev_b32 v{t}, 5, v0\nv_lshlrev_b32 v{t}, 3, v{t}\nv_bfe_u32 v{t+1}, v0, 2, 2\nv_add_u32 v{t}, v{t}, v{t+1}\nv_mul_u32_u24 v{t}, 40, v{t}')
    a(f'v_bfe_u32 v{t+1}, v0, 4, 1\nv_lshl_add_u32 v{t}, v{t+1}, 5, v{t}\nv_and_b32 v{t+1}, 3, v0\nv_lshl_add_u32 v{t}, v{t+1}, 3, v{t}\nv_add_u32 v{vRW}, {WOFF}, v{t}')
    compute(a, 'K1kv', 'R', 'T', kv=True)
    a(f's_lshl_b32 s33, s3, 2\ns_add_u32 s33, s33, s{sWv}\ns_mul_i32 s34, s33, {KVT}')
    K = vA; V = vA+16
    for i in range(4): a(f'v_cvt_pk_bf16_f32 v{t+i}, v{K+2*i}, v{K+2*i+1}')
    a(f'v_lshlrev_b32 v{t+8}, 4, v0\nbuffer_store_dwordx4 v[{t}:{t+3}], v{t+8}, s[{sO}:{sO+3}], s34 offen')
    a(f'v_cvt_pk_bf16_f32 v{t+4}, v{K+8}, v{K+9}\nv_mov_b32 v{t+5}, 0x3f80\nv_lshlrev_b32 v{t+9}, 3, v0')
    a(f'v_mul_f32 v{t+6}, v{K}, v{K}')
    for i in range(1, 8): a(f'v_fmac_f32 v{t+6}, v{K+i}, v{K+i}')
    a(f'v_mul_f32 v{t+7}, v{K+8}, v{K+8}\nv_fmac_f32 v{t+7}, v{K+9}, v{K+9}')
    a(f'v_cmp_gt_u32 vcc, 32, v0\ns_nop 1\nv_cndmask_b32 v{t+7}, 0, v{t+7}, vcc\nv_add_f32 v{t+6}, v{t+6}, v{t+7}')
    a(f's_and_saveexec_b64 s[54:55], vcc\nbuffer_store_dwordx2 v[{t+4}:{t+5}], v{t+9}, s[{sO}:{sO+3}], s34 offen offset:1024\ns_mov_b64 exec, s[54:55]')
    a(f'v_mov_b32 v{t+7}, v{t+6}\ns_nop 1\nv_permlane32_swap_b32 v{t+6}, v{t+7}\nv_add_f32 v{t+6}, v{t+6}, v{t+7}')
    for off in (0x041F, 0x081F, 0x101F, 0x201F, 0x401F):
        a(f'ds_swizzle_b32 v{t+7}, v{t+6} offset:{off}\ns_waitcnt lgkmcnt(0)\nv_max_f32 v{t+6}, v{t+6}, v{t+7}')
    a(f's_lshl_b32 s35, s33, 2\ns_add_u32 s35, s35, {WS_KMX-WS_KV}\nv_mov_b32 v{t+10}, 0\nv_cmp_eq_u32 vcc, 0, v0')
    a(f's_and_saveexec_b64 s[54:55], vcc\nbuffer_store_dword v{t+6}, v{t+10}, s[{sO}:{sO+3}], s35 offen\ns_mov_b64 exec, s[54:55]')
    a(f'v_and_b32 v{t+8}, 31, v0\nv_lshrrev_b32 v{t+9}, 5, v0\nv_mul_u32_u24 v{t+9}, 20, v{t+9}\nv_add_u32 v{t+9}, v{t+9}, v{t+8}\nv_lshlrev_b32 v{t+9}, 4, v{t+9}')
    a(f'v_cmp_eq_u32 s[56:57], 18, v{t+8}\nv_cmp_eq_u32 s[58:59], 19, v{t+8}\nv_cmp_ge_u32 vcc, 19, v{t+8}\nv_mov_b32 v{t+10}, 0x3f803f80')
    for m in range(2):
        for i in range(4):
            a(f'v_cvt_pk_bf16_f32 v{t+4*m+i}, v{V+8*m+2*i}, v{V+8*m+2*i+1}\nv_cndmask_b32 v{t+4*m+i}, v{t+4*m+i}, v{t+10}, s[56:57]\nv_cndmask_b32 v{t+4*m+i}, v{t+4*m+i}, 0, s[58:59]')
    a(f's_and_saveexec_b64 s[54:55], vcc')
    for m in range(2): a(f'buffer_store_dwordx4 v[{t+4*m}:{t+4*m+3}], v{t+9}, s[{sO}:{sO+3}], s34 offen offset:{1280+640*m}')
    a('s_mov_b64 exec, s[54:55]')
    if STAMP:
        a('s_waitcnt vmcnt(0)'); stamp(a, 4); stamp_flush(a, 5, 90, VST)
    a('s_endpgm')
    WSEQ = os.environ.get('WSEQ', '1') == '1'
    a('K1_wt:')
    a('s_sub_u32 s3, s2, 208\ns_waitcnt lgkmcnt(0)')
    srd(a, 8, 38, 2048*578); srd(a, 12, 40, 2048*578); srd(a, 16, 50, 289*(8192 if WTB else 16384), WS_WT)
    a('v_lshlrev_b32 v2, 4, v0\ns_mov_b32 s26, s10\ns_mov_b32 s27, s11')
    for k in range(3):
        if WSEQ: a(f's_mul_i32 s22, s3, 3\ns_add_u32 s22, s22, {k}\ns_mul_i32 s22, s22, 9248')
        else: a(f's_add_u32 s22, s3, {48*k}\ns_mul_i32 s22, s22, 9248')
        for n in range(3):
            if n == 2: a(f's_cmp_ge_u32 s{sW8}, 4\ns_cbranch_scc1 K1_wt_sk{k}')
            a(f's_add_u32 s20, s{sW8}, {8*n}\ns_cmp_lt_u32 s20, 10\ns_cselect_b32 s24, s8, s12\ns_cselect_b32 s25, s9, s13\ns_cselect_b32 s21, 0, 10\ns_sub_u32 s21, s20, s21')
            a(f's_lshl_b32 s21, s21, 10\ns_add_u32 s33, s22, s21\ns_lshl_b32 s20, s20, 10\ns_add_u32 m0, s20, {20480*k}\ns_nop 0\nbuffer_load_dwordx4 v2, s[24:27], s33 offen lds')
        a(f'K1_wt_sk{k}:')
    a(f'v_and_b32 v3, 15, v0\nv_lshrrev_b32 v4, 4, v0\ns_lshl_b32 s20, s{sW8}, 2\nv_add_u32 v4, s20, v4')
    a('v_mul_u32_u24 v5, 578, v3\nv_lshl_add_u32 v5, v4, 1, v5')
    if WTB: a('v_lshlrev_b32 v6, 13, v4\nv_lshl_add_u32 v6, v3, 2, v6')
    else: a('v_lshlrev_b32 v6, 14, v4\nv_lshl_add_u32 v6, v3, 3, v6')
    if not WTB: a(f's_mov_b32 s34, {f32bits(2.0/(2048*576))}\nv_mov_b32 v8, s34\nv_mov_b32 v9, {f32bits(1.0/(2048*576))}\nv_cmp_eq_u32 vcc, 0, v4\ns_nop 1\nv_cndmask_b32 v9, v8, v9, vcc')
    for i in range(20): a(f'v_mov_b32 v{10+i}, 0')
    a(f'v_add_u32 v30, {9*32*(8192 if WTB else 16384)}, v6')
    stamp(a, 1)
    a('s_waitcnt vmcnt(0)\ns_barrier')
    stamp(a, 2)
    a('s_mov_b32 s21, 0')
    a('K1_wt_task:')
    a(('s_mul_i32 s22, s3, 3\ns_add_u32 s22, s22, s21' if WSEQ else 's_mul_i32 s22, s21, 48\ns_add_u32 s22, s22, s3') + '\ns_cmp_ge_u32 s22, 128\ns_cbranch_scc1 K1_wt_done')
    a('s_lshl_b32 s22, s22, %d' % (6 if WTB else 7))
    a('s_mul_i32 s23, s21, 20480\nv_add_u32 v7, s23, v5')
    for it in range(10): a(f'{"ds_read_u16" if WTB else "ds_read_u16_d16_hi"} v{10+2*it}, v7 offset:{64*it}\nds_read_u16_d16_hi v{11+2*it}, v7 offset:{10240+64*it}')
    for it in range(10 if WTB else 0):
        p = 32 + it
        a(f's_waitcnt lgkmcnt({min(15, 18-2*it)})\nv_or_b32 v{p}, v{10+2*it}, v{11+2*it}')
        if it < 9: a(f's_add_u32 s33, s22, {it*32*8192}\nbuffer_store_dword v{p}, v6, s[16:19], s33 offen')
        else: a(f'buffer_store_dword v{p}, v30, s[16:19], s22 offen')
    for it in range(0 if WTB else 10):
        sc = 'v9' if it in (0, 9) else 's34'
        p = 32 + 2*it
        a(f's_waitcnt lgkmcnt({min(15, 18-2*it)})\nv_mul_f32 v{p}, {sc}, v{10+2*it}\nv_mul_f32 v{p+1}, {sc}, v{11+2*it}')
        if it < 9: a(f's_add_u32 s33, s22, {it*32*16384}\nbuffer_store_dwordx2 v[{p}:{p+1}], v6, s[16:19], s33 offen')
        else: a(f'buffer_store_dwordx2 v[{p}:{p+1}], v30, s[16:19], s22 offen')
    a('s_add_u32 s21, s21, 1\ns_cmp_lt_u32 s21, 3\ns_cbranch_scc1 K1_wt_task')
    a('K1_wt_done:')
    if PF and a.pf_later:
        a(f's_lshl_b32 s20, s3, 3\ns_add_u32 s20, s20, s{sW8}\ns_lshl_b32 s20, s20, 6\nv_add_u32 v2, s20, v0\nv_lshlrev_b32 v2, 7, v2')
        a('s_load_dwordx2 s[36:37], s[0:1], 56')
        pc_addr(a, 38, 'K2_base', 'K1_pc2')
        a('s_waitcnt lgkmcnt(0)')
        srd(a, 8, 36, 576*1152); srd(a, 12, 38, a.pf_later)
        a(f'buffer_load_dword v3, v2, s[8:11], 0 offen\nv_subrev_u32 v4, {5184*128}, v2\nbuffer_load_dword v5, v4, s[12:15], 0 offen\ns_waitcnt vmcnt(0)')
    if STAMP:
        a('s_waitcnt vmcnt(0)'); stamp(a, 3); stamp(a, 4); stamp_flush(a, 5, 90, VST)
    a('K1_end:\ns_endpgm')
```
